```python
import torch

def _softmax(x, axis=-1):
    return torch.softmax(x, dim=axis)

def _gelu(x):
    return torch.nn.functional.gelu(x, approximate='tanh')

def _silu(x):
    return torch.nn.functional.silu(x)

def _sigmoid(x):
    return torch.sigmoid(x)

def _layernorm(x, axis=-1, eps=1e-05):
    m = x.mean(dim=axis, keepdim=True)
    v = x.var(dim=axis, keepdim=True, unbiased=False)
    return (x - m) / torch.sqrt(v + eps)

def _scatter_add(tgt, idx, src, axis=0):
    return tgt.clone().index_add_(axis, idx, src)

def _segment_sum(src, seg, n):
    out = torch.zeros((n,) + src.shape[1:], dtype=src.dtype)
    return out.index_add_(0, seg, src)

def _pad(x, pw):
    flat = tuple((v for pair in reversed(pw) for v in pair))
    return torch.nn.functional.pad(x, flat)
kernel_name = 'standalone__molecular_angular_painn__graph'

def setup_inputs():

    _w = lambda a: (lambda t: t.to(torch.bfloat16) if t.is_floating_point() else t)(torch.as_tensor(a))
    N, deg, D = (10000, 32, 128)
    n_rbf = max(16, 4)
    E = N * deg
    cutoff = 5.0
    freqs = (torch.arange(1, n_rbf + 1) * torch.pi / cutoff).to(float)
    return {'sv': _w((lambda *s: torch.randn(*s, dtype=torch.bfloat16) * 0.4)(N, 4, D) * 0.3), 'pos': _w((lambda *s: torch.randn(*s, dtype=torch.bfloat16) * 1.6)(N, 3) * 1.2), 'src': _w((lambda lo, hi, *s: torch.randint(lo, hi, s))(0, N, E).to(torch.int64)), 'dst': _w((lambda lo, hi, *s: torch.randint(lo, hi, s))(0, N, E).to(torch.int64)), 'freqs': _w(freqs), 'w_phi1': _w((lambda *s: torch.randn(*s, dtype=torch.bfloat16) * 3.2)(D, D) / D ** 0.5), 'w_phi2': _w((lambda *s: torch.randn(*s, dtype=torch.bfloat16) * 1.6)(D, 3 * D) / D ** 0.5), 'w_rbf': _w((lambda *s: torch.randn(*s, dtype=torch.bfloat16) * 1.6)(n_rbf, 3 * D) / n_rbf ** 0.5)}

def reference(sv, pos, src, dst, freqs, w_phi1, w_phi2, w_rbf):
    N, _, D = sv.shape
    E = src.shape[0]
    PI, cutoff = (3.141592653589793, 5.0)
    s, v = (sv[:, 0, :].clone(), sv[:, 1:, :].clone())
    r_vec = pos[src] - pos[dst]
    d = torch.sqrt((r_vec * r_vec).sum(-1) + 1e-08)
    r_hat = r_vec / d[:, None]
    rbf = torch.sin(d[:, None] * freqs[None, :]) / d[:, None]
    fcut = 0.5 * (torch.cos(PI * d / cutoff) + 1.0)
    fcut = torch.where(d < cutoff, fcut, 0.0 * d)
    Wf = rbf @ w_rbf * fcut[:, None]
    phi = (_silu(s @ w_phi1) @ w_phi2)[src]
    m = phi * Wf
    m_s, m_vv, m_vr = (m[:, :D].clone(), m[:, D:2 * D].clone(), m[:, 2 * D:].clone())
    ds = _segment_sum(m_s, dst, N)
    dv_e = m_vv[:, None, :] * v[src] + m_vr[:, None, :] * r_hat[:, :, None]
    dv = _segment_sum(dv_e.reshape(E, 3 * D), dst, N).reshape(N, 3, D)
    return sv + torch.concatenate([ds[:, None, :], dv], axis=1)
```

```python
import re

TRANS = ('v_exp_f32', 'v_log_f32', 'v_rcp_f32', 'v_rsq_f32', 'v_sqrt_f32', 'v_sin_f32', 'v_cos_f32',
         'v_rcp_iflag_f32')
RMW = ('v_fmac_', 'v_dot2c_', 'v_pk_fmac', 'v_mac_')


def regs_of(tok):
    tok = tok.strip()
    tok = tok.lstrip('-')
    m = re.match(r'^(?:abs\()?\|?([vsa])(\d+)\|?\)?$', tok)
    if m:
        return {(m.group(1), int(m.group(2)))}
    m = re.match(r'^([vsa])\[(\d+):(\d+)\]$', tok)
    if m:
        return {(m.group(1), i) for i in range(int(m.group(2)), int(m.group(3)) + 1)}
    if tok in ('vcc', 'vcc_lo', 'vcc_hi'):
        return {('s', 'vcc')}
    if tok in ('exec', 'exec_lo', 'exec_hi'):
        return {('s', 'exec')}
    if tok == 'm0':
        return {('s', 'm0')}
    return set()


class Ins:
    __slots__ = ('text', 'op', 'kind', 'wr', 'rd', 'a', 'b', 'c', 'passes', 'dpp', 'trans', 'target',
                 'wide_store', 'ws', 'lanesel', 'ldsdma')

    def __init__(self, text):
        self.text = text
        t = text.split(';')[0].strip()
        parts = t.split(None, 1)
        self.op = parts[0]
        rest = parts[1] if len(parts) > 1 else ''
        ops = [o.strip() for o in rest.split(',')] if rest else []
        clean = []
        for o in ops:
            w = o.split()
            clean.append(w[0] if w else '')
        op = self.op
        self.wr = set(); self.rd = set(); self.a = self.b = self.c = set()
        self.passes = 0; self.dpp = False; self.trans = False; self.target = None
        self.wide_store = set(); self.ws = 1; self.lanesel = set(); self.ldsdma = False
        R = [regs_of(o) for o in clean]
        allr = lambda l: set().union(*l) if l else set()
        if op.startswith('v_mfma'):
            self.kind = 'mfma'
            self.wr = R[0]; self.a = R[1]; self.b = R[2]; self.c = R[3]
            self.rd = R[1] | R[2] | R[3]
            if '32x32' in op:
                self.passes = 16 if op.endswith('x2_f32') else 8
            else:
                self.passes = 8 if op.endswith('x4_f32') else 4
            assert 'bf16' in op or 'f16' in op, 'only XDL modelled'
        elif op.startswith('v_'):
            self.kind = 'valu'
            self.dpp = '_dpp' in op
            self.trans = op.replace('_e32', '').replace('_e64', '') in TRANS
            if 'permlane' in op:
                self.wr = R[0] | R[1]; self.rd = R[0] | R[1]
            elif re.match(r'v_(add|sub|subrev|addc|subb|subbrev)_co_', op):
                self.wr = R[0] | R[1]; self.rd = allr(R[2:])
            else:
                self.wr = R[0]; self.rd = allr(R[1:])
                if any(op.startswith(x) for x in RMW) or self.dpp or 'writelane' in op:
                    self.rd = self.rd | R[0]
                if op.startswith('v_cmpx'):
                    raise ValueError('v_cmpx not modelled')
            if op.startswith('v_readlane') or op.startswith('v_writelane'):
                self.lanesel = R[2]
        elif op.startswith('buffer_') or op.startswith('global_'):
            self.kind = 'vmem'
            isload = '_load_' in op
            lds = ' lds' in (' ' + rest) or 'load_lds' in op
            self.ldsdma = lds
            rtn = 'atomic' in op and ' sc0' in rest
            if isload and not lds:
                self.wr = R[0]; self.rd = allr(R[1:])
                if 'd16' in op:
                    self.rd |= R[0]
            else:
                self.rd = allr(R)
                if rtn:
                    self.wr = R[0]
                if 'store' in op and ('x3' in op or 'x4' in op):
                    self.wide_store = R[0] if op.startswith('buffer_') else R[1]
        elif op.startswith('ds_'):
            self.kind = 'ds'
            if op.startswith('ds_read') or '_rtn_' in op or 'permute' in op or 'swizzle' in op:
                self.wr = R[0]; self.rd = allr(R[1:])
            else:
                self.rd = allr(R)
        elif op.startswith('s_'):
            self.kind = 'salu'
            if op == 's_nop':
                self.ws = int(clean[0], 0) + 1
            elif op.startswith('s_cbranch') or op == 's_branch':
                self.target = clean[0]
            elif op.startswith('s_cmp') or op.startswith('s_bitcmp') or op in (
                    's_waitcnt', 's_barrier', 's_endpgm', 's_setprio', 's_sleep'):
                self.rd = allr(R)
            else:
                self.wr = R[0] if R else set(); self.rd = allr(R[1:])
                if 'saveexec' in op:
                    self.wr = self.wr | {('s', 'exec')}
        else:
            raise ValueError('unknown op ' + text)


def isv(s):
    return {x for x in s if x[0] in 'va'}


def iss(s):
    return {x for x in s if x[0] == 's'}


MFMA_D_OTHER = {2: 5, 4: 8, 8: 12, 16: 20}
MFMA_D_C_OVL = {2: 4, 4: 6, 8: 10, 16: 18}
MFMA_C_WAR = {2: 1, 4: 3, 8: 7, 16: 15}


def need(p, c):
    n = 0
    if p.kind == 'valu':
        wv = isv(p.wr); wsg = iss(p.wr)
        if c.kind == 'mfma' and wv & c.rd:
            n = max(n, 2)
        if c.kind == 'valu':
            if wv & c.rd:
                if c.dpp or 'permlane' in c.op:
                    n = max(n, 2)
                if c.op.startswith('v_readfirstlane') or c.op.startswith('v_readlane'):
                    n = max(n, 1)
                if p.trans and not c.trans:
                    n = max(n, 1)
            if wsg & c.rd:
                n = max(n, 2)
            if wsg & c.lanesel:
                n = max(n, 4)
        if c.kind == 'vmem' and wsg & c.rd:
            n = max(n, 5)
        if c.kind == 'salu' and wsg & c.rd:
            n = max(n, 1)
        if p.trans and c.kind in ('vmem', 'ds', 'mfma') and wv & c.rd:
            n = max(n, 2)
    if p.kind == 'mfma':
        d = p.wr
        if c.kind == 'mfma':
            if d & (c.a | c.b):
                n = max(n, MFMA_D_OTHER[p.passes])
            if d & c.c:
                if d == c.c and p.passes == c.passes:
                    n = max(n, 2 if p.passes == 2 else 0)
                else:
                    n = max(n, MFMA_D_C_OVL[p.passes])
            elif d & c.wr:
                n = max(n, MFMA_D_C_OVL[p.passes])
        elif c.kind in ('valu', 'vmem', 'ds'):
            if d & (c.rd | c.wr):
                n = max(n, MFMA_D_OTHER[p.passes])
            if c.kind == 'valu' and p.c & c.wr:
                n = max(n, MFMA_C_WAR[p.passes])
    if p.kind == 'vmem' and p.wide_store and (p.wide_store & c.wr):
        n = max(n, 2)
    if p.kind == 'salu' and ('s', 'm0') in p.wr and c.kind == 'vmem' and c.ldsdma:
        n = max(n, 1)
    return n


class Asm:
    def __init__(self):
        self.items = []

    def __call__(self, s):
        for line in s.split('\n'):
            line = line.strip()
            if not line or line.startswith(';'):
                continue
            if line.endswith(':') and ' ' not in line:
                self.items.append(('l', line[:-1]))
            elif line.startswith('.'):
                self.items.append(('r', line))
            else:
                self.items.append(('i', Ins(line)))

    def raw(self, s):
        self.items.append(('r', s))

    def fix_hazards(self, window=22):
        items = self.items
        inserted = 0
        changed = True
        rounds = 0
        while changed:
            changed = False
            rounds += 1
            srcs = {}
            for idx, (k, x) in enumerate(items):
                if k == 'i' and x.target:
                    srcs.setdefault(x.target, []).append(idx)

            def worst(idx, cons, dist, seen):
                extra = 0
                j = idx - 1
                while j >= 0 and dist < window:
                    k, x = items[j]
                    if k == 'l':
                        for s in srcs.get(x, []):
                            if (s, dist) not in seen:
                                seen.add((s, dist))
                                extra = max(extra, worst(s, cons, dist + 1, seen))
                    elif k == 'i':
                        if x.op in ('s_branch', 's_endpgm'):
                            break
                        n = need(x, cons)
                        if n > dist:
                            extra = max(extra, n - dist)
                        dist += x.ws
                    j -= 1
                return extra

            out = []
            for idx, it in enumerate(items):
                if it[0] == 'i' and it[1].op != 's_nop':
                    e = worst(idx, it[1], 0, set())
                    if e > 0:
                        new = items[:idx]
                        while e > 0:
                            k = min(e, 16)
                            new.append(('i', Ins('s_nop %d' % (k - 1))))
                            e -= k
                        new += items[idx:]
                        self.items = items = new
                        inserted += 1
                        changed = True
                        break
        return inserted

    def text(self):
        out = []
        for k, x in self.items:
            if k == 'i':
                out.append('    ' + x.text)
            elif k == 'l':
                out.append(x + ':')
            else:
                out.append(x)
        return '\n'.join(out) + '\n'

    def max_regs(self):
        mv = ms = -1
        for k, x in self.items:
            if k == 'i':
                for r in x.wr | x.rd:
                    if r[0] == 'v':
                        mv = max(mv, r[1])
                    if r[0] == 's' and isinstance(r[1], int):
                        ms = max(ms, r[1])
        return mv + 1, ms + 1


def vr(a, n=1):
    return 'v%d' % a if n == 1 else 'v[%d:%d]' % (a, a + n - 1)


def sr(a, n=1):
    return 's%d' % a if n == 1 else 's[%d:%d]' % (a, a + n - 1)
```

```python
import sys
from asmlib import Asm, vr, sr

N = 10000
E = 320000
NAME = 'standalone__molecular_angular_painn__graph'

TABM_SLICE = N * 256
TABT_BASE = 4 * TABM_SLICE
TABT_SLICE = N * 64
MISC_BASE = TABT_BASE + 4 * TABT_SLICE
GT_OFF = 0
OFFS_OFF = 65536
RECS_OFF = 135168
NCHUNK = 250
CHUNK = 1280
MISC_SIZE = RECS_OFF + NCHUNK * CHUNK * 12
NB = 64
BN = 157
DMIN = 0x38D2
NROWS = 1998
NULL_GA = NROWS * 32

NG = 209
NGT = 8
NK1 = NG + NCHUNK + NGT

S = 4864
L_G = 0
L_OB = 64000
L_CARRY = 104192
L_HIST = 112384
L_FLAG = 113152
L_START = 113216
L_QN = 113984
L_META = 115200
L_GA = 154112
L_TOTAL = 163840
QCAP = 4 * (S // 16 - 2)
PM = 10

OPT = dict(k1_store='', out_store='')


def srd(a, d, lo, hi, size):
    a(f'''s_mov_b32 s{d}, {lo}
    s_mov_b32 s{d+1}, {hi}
    s_mov_b32 s{d+2}, {size}
    s_mov_b32 s{d+3}, 0x00020000''')


def bf16_round_pair(a, x, y, tmp, mask):
    a(f'''v_cvt_pk_bf16_f32 v{tmp}, v{x}, v{y}
    v_lshlrev_b32 v{x}, 16, v{tmp}
    v_and_b32 v{y}, {mask}, v{tmp}''')


def bf16_round1(a, x):
    a(f'''v_cvt_pk_bf16_f32 v{x}, v{x}, v{x}
    v_and_b32 v{x}, 0xffff0000, v{x}''')


def scan64(a, v):
    for sh in (1, 2, 4, 8):
        a(f'v_add_u32_dpp v{v}, v{v}, v{v} row_shr:{sh} row_mask:0xf bank_mask:0xf bound_ctrl:0')
    a(f'v_add_u32_dpp v{v}, v{v}, v{v} row_bcast:15 row_mask:0xa bank_mask:0xf')
    a(f'v_add_u32_dpp v{v}, v{v}, v{v} row_bcast:31 row_mask:0xc bank_mask:0xf')


def gen_k1():
    a = Asm()
    st = OPT['k1_store']
    a(f'''
    s_cmp_ge_u32 s2, {NK1}
    s_cbranch_scc1 K1_END
    s_load_dwordx16 s[8:23], s[0:1], 0
    s_load_dwordx2 s[24:25], s[0:1], 80
    v_and_b32 v1, 63, v0
    v_lshrrev_b32 v2, 4, v1
    v_and_b32 v3, 15, v1
    v_lshrrev_b32 v4, 6, v0
    v_readfirstlane_b32 s26, v4
    s_cmp_ge_u32 s2, {NG + NCHUNK}
    s_cbranch_scc1 K1_GT
    s_cmp_ge_u32 s2, {NG}
    s_cbranch_scc1 K1_BIN
    ''')
    SB = 16
    W1B = 64
    W2B = 96
    AC = 200
    TM = 52
    a(f'''
    s_mul_i32 s27, s2, 48
    s_movk_i32 s48, 0x2000
    s_movk_i32 s49, 0x4000
    s_movk_i32 s50, 0x6000
    s_mov_b32 s52, 49152
    s_mov_b32 s53, 73728
    s_mov_b32 s54, 0x05040100
    s_mov_b32 s55, 0x07060302
    s_lshl_b32 s56, s26, 6
    v_add_u32 v5, s27, v3
    v_lshlrev_b32 v5, 10, v5
    v_lshl_add_u32 v5, v2, 4, v5
    v_add_u32 v6, 0x4000, v5
    v_add_u32 v7, 0x8000, v5
    v_lshlrev_b32 v8, 2, v3
    v_add_u32 v8, s56, v8
    v_lshl_add_u32 v9, v2, 11, v8
    v_mul_u32_u24 v10, 6144, v2
    v_add_u32 v10, v10, v8
    v_add_u32 v11, 3072, v10
    v_lshl_add_u32 v12, v2, 2, s27
    v_lshl_add_u32 v13, v12, 10, v8
    v_lshlrev_b32 v14, 4, v3
    v_lshl_add_u32 v14, v12, 8, v14
    v_lshlrev_b32 v15, 2, v3
    v_lshl_add_u32 v15, v12, 6, v15
    s_mul_i32 s57, s26, {TABM_SLICE}
    s_mul_i32 s58, s26, {TABT_SLICE}
    s_add_u32 s58, s58, {TABT_BASE}
    s_waitcnt lgkmcnt(0)
    ''')
    srd(a, 28, 's8', 's9', N * 1024)
    srd(a, 32, 's18', 's19', 32768)
    srd(a, 36, 's20', 's21', 98304)
    a(f'''s_add_u32 s40, s24, s57
    s_addc_u32 s41, s25, 0
    s_mov_b32 s42, {TABM_SLICE}
    s_mov_b32 s43, 0x00020000
    s_add_u32 s44, s24, s58
    s_addc_u32 s45, s25, 0
    s_mov_b32 s46, {TABT_SLICE}
    s_mov_b32 s47, 0x00020000''')
    for T in range(3):
        for u in range(4):
            a(f'buffer_load_dwordx4 {vr(SB + (T * 4 + u) * 4, 4)}, v{5 + T}, s[28:31], 0 offen offset:{u * 64}')
    so1 = ['0', 's48', 's49', 's50']
    for u in range(4):
        for ii in range(8):
            a(f'buffer_load_dword v{W1B + u * 8 + ii}, v9, s[32:35], {so1[u]} offen offset:{ii * 256}')
    so2 = ['0', 's50', 's52', 's53']

    def w2load(bi):
        u, ty = divmod(bi, 3)
        for ii in range(8):
            base = 10 if ii < 4 else 11
            a(f'buffer_load_dword v{W2B + (bi + 1) * 8 + ii}, v{base}, s[36:39], {so2[u]} offen '
              f'offset:{(ii & 3) * 768 + ty * 256}')

    def perm8(dst, src):
        for x in range(4):
            a(f'v_perm_b32 v{dst + x}, v{src + 2 * x + 1}, v{src + 2 * x}, s54')
        for x in range(4):
            a(f'v_perm_b32 v{dst + 4 + x}, v{src + 2 * x + 1}, v{src + 2 * x}, s55')

    w2load(0); w2load(1)
    waits = [40, 48, 48, 48]
    more = [[2, 3], [4], [5], [6]]
    for u in range(4):
        a(f's_waitcnt vmcnt({waits[u]})')
        fr = AC + 24 + (u & 1) * 8
        perm8(fr, W1B + u * 8)
        for bi in more[u]:
            w2load(bi)
        for pa in range(2):
            for T in range(3):
                d = AC + (pa * 3 + T) * 4
                c = '0' if u == 0 else vr(d, 4)
                a(f'v_mfma_f32_16x16x32_bf16 {vr(d, 4)}, {vr(fr + pa * 4, 4)}, {vr(SB + (T * 4 + u) * 4, 4)}, {c}')
    for bi in range(7, 12):
        w2load(bi)
    HO = AC + 24
    a('v_lshlrev_b32 v4, 4, v1')
    a('s_lshl_b32 s59, s26, 10')
    a('v_add_u32 v248, s59, v4')
    for T in range(3):
        for r in range(4):
            xe = AC + T * 4 + r
            xo = AC + (3 + T) * 4 + r
            bf16_round_pair(a, xe, xo, 249, '0xffff0000')
            a(f'''v_mul_f32 v250, 0xbfb8aa3b, v{xe}
            v_mul_f32 v251, 0xbfb8aa3b, v{xo}
            v_exp_f32 v250, v250
            v_exp_f32 v251, v251
            v_add_f32 v250, 1.0, v250
            v_add_f32 v251, 1.0, v251
            v_rcp_f32 v250, v250
            v_rcp_f32 v251, v251
            v_mul_f32 v250, v250, v{xe}
            v_mul_f32 v251, v251, v{xo}
            v_cvt_pk_bf16_f32 v{HO + T * 4 + r}, v250, v251''')
        a(f'ds_write_b128 v248, {vr(HO + T * 4, 4)} offset:{T * 4096}')
    for T in range(3):
        if T:
            a(f'v_add_u32 v{5 + T}, {T * 16384}, v13')
        base = 13 if T == 0 else 5 + T
        for r in range(4):
            for k in range(3):
                a(f'buffer_load_dword v{SB + (T * 4 + r) * 3 + k}, v{base}, s[28:31], 0 offen '
                  f'offset:{r * 1024 + (1 + k) * 256}')
    a('s_waitcnt lgkmcnt(0)')
    a('s_barrier')

    def hread(T):
        for u in range(4):
            a(f'ds_read_b128 {vr(W1B + (T & 1) * 16 + u * 4, 4)}, v4 offset:{(T * 4 + u) * 1024}')

    hread(0); hread(1)
    for bi in range(12):
        a(f's_waitcnt vmcnt({min(63, 8 * (11 - bi) + 36)})')
        perm8(W2B + bi * 8, W2B + (bi + 1) * 8)

    def gemm2(T):
        ab = AC + (T & 1) * 24
        for u in range(4):
            for ty in range(3):
                for pa in range(2):
                    d = ab + (ty * 2 + pa) * 4
                    c = '0' if u == 0 else vr(d, 4)
                    a(f'v_mfma_f32_16x16x32_bf16 {vr(d, 4)}, {vr(W1B + (T & 1) * 16 + u * 4, 4)}, '
                      f'{vr(W2B + (u * 3 + ty) * 8 + pa * 4, 4)}, {c}')

    def epi(T):
        ab = AC + (T & 1) * 24
        for r in range(4):
            o = TM + (r & 1) * 4
            g = lambda ty, pa: ab + (ty * 2 + pa) * 4 + r
            a(f'''v_cvt_pk_bf16_f32 v{60 + (r & 1)}, v{g(0, 0)}, v{g(0, 1)}
            v_cvt_pk_bf16_f32 v{o + 3}, v{g(2, 0)}, v{g(2, 1)}
            v_cvt_pk_bf16_f32 v249, v{g(1, 0)}, v{g(1, 1)}
            v_lshlrev_b32 v250, 16, v249
            v_and_b32 v251, 0xffff0000, v249''')
            for k in range(3):
                s = SB + (T * 4 + r) * 3 + k
                a(f'''v_lshlrev_b32 v252, 16, v{s}
                v_and_b32 v253, 0xffff0000, v{s}
                v_mul_f32 v252, v252, v250
                v_mul_f32 v253, v253, v251
                v_cvt_pk_bf16_f32 v{o + k}, v252, v253''')
            a(f'buffer_store_dwordx4 {vr(o, 4)}, v14, s[40:43], 0 offen offset:{r * 256} {st}')
            a(f'buffer_store_dword v{60 + (r & 1)}, v15, s[44:47], 0 offen offset:{T * 1024 + r * 64} {st}')
        a('v_add_u32 v14, 0x1000, v14')

    a('s_waitcnt lgkmcnt(4)')
    gemm2(0)
    a('s_waitcnt lgkmcnt(0)')
    gemm2(1)
    hread(2)
    a('s_waitcnt vmcnt(0)')
    epi(0)
    a('s_waitcnt lgkmcnt(0)')
    gemm2(2)
    epi(1)
    epi(2)
    a('s_endpgm')

    a('K1_BIN:')
    a(f'''
    s_sub_u32 s27, s2, {NG}
    s_mul_i32 s48, s27, {CHUNK * 4}
    v_lshlrev_b32 v4, 4, v0
    v_lshlrev_b32 v5, 2, v0
    v_add_u32 v6, 0x1000, v5
    v_mov_b32 v7, 0
    ds_write_b32 v5, v7
    s_waitcnt lgkmcnt(0)
    ''')
    srd(a, 28, 's12', 's13', E * 4)
    srd(a, 32, 's14', 's15', E * 4)
    srd(a, 36, 's10', 's11', N * 6)
    a(f'''s_add_u32 s40, s24, {MISC_BASE}
    s_addc_u32 s41, s25, 0
    s_mov_b32 s42, {MISC_SIZE}
    s_mov_b32 s43, 0x00020000
    buffer_load_dwordx4 v[8:11], v4, s[28:31], s48 offen
    buffer_load_dword v12, v6, s[28:31], s48 offen
    buffer_load_dwordx4 v[16:19], v4, s[32:35], s48 offen
    buffer_load_dword v20, v6, s[32:35], s48 offen
    s_barrier
    s_waitcnt vmcnt(0)
    ''')
    for p in range(5):
        a(f'''v_mul_u32_u24 v4, 6, v{8 + p}
        v_mul_u32_u24 v5, 6, v{16 + p}
        v_and_b32 v4, -4, v4
        v_and_b32 v5, -4, v5
        buffer_load_dwordx2 {vr(24 + 4 * p, 2)}, v4, s[36:39], 0 offen
        buffer_load_dwordx2 {vr(26 + 4 * p, 2)}, v5, s[36:39], 0 offen''')
    a('s_movk_i32 s49, 6679')
    a('v_mov_b32 v7, 1')
    for p in range(5):
        R = 48 + 4 * p
        ps, pd = 24 + 4 * p, 26 + 4 * p
        a(f's_waitcnt vmcnt({2 * (4 - p)})')
        a(f'''v_and_b32 v80, 1, v{8 + p}
        v_lshlrev_b32 v80, 4, v80
        v_and_b32 v81, 1, v{16 + p}
        v_lshlrev_b32 v81, 4, v81
        v_alignbit_b32 v82, v{ps + 1}, v{ps}, v80
        v_lshrrev_b32 v83, v80, v{ps + 1}
        v_alignbit_b32 v84, v{pd + 1}, v{pd}, v81
        v_lshrrev_b32 v85, v81, v{pd + 1}
        v_lshlrev_b32 v86, 16, v82
        v_and_b32 v87, 0xffff0000, v82
        v_lshlrev_b32 v88, 16, v83
        v_lshlrev_b32 v89, 16, v84
        v_and_b32 v90, 0xffff0000, v84
        v_lshlrev_b32 v91, 16, v85
        v_sub_f32 v86, v86, v89
        v_sub_f32 v87, v87, v90
        v_sub_f32 v88, v88, v91''')
        bf16_round_pair(a, 86, 87, 80, '0xffff0000')
        bf16_round1(a, 88)
        a('''v_mul_f32 v89, v86, v86
        v_mul_f32 v90, v87, v87
        v_mul_f32 v91, v88, v88''')
        bf16_round_pair(a, 89, 90, 80, '0xffff0000')
        bf16_round1(a, 91)
        a('''v_add_f32 v89, v89, v90
        v_add_f32 v89, v89, v91''')
        bf16_round1(a, 89)
        a('v_add_f32 v89, 0x322bcc77, v89')
        bf16_round1(a, 89)
        a('v_sqrt_f32 v89, v89')
        bf16_round1(a, 89)
        a(f'''v_rcp_f32 v90, v89
        v_cmp_gt_f32 vcc, 0x40a00000, v89
        s_mov_b64 {sr(60 + 2 * p, 2)}, vcc
        v_mul_f32 v86, v86, v90
        v_mul_f32 v87, v87, v90
        v_mul_f32 v88, v88, v90
        v_cvt_pk_bf16_f32 v86, v86, v86
        v_and_b32 v86, 0xffff0000, v86
        v_or_b32 v{R}, v86, v{8 + p}
        v_cvt_pk_bf16_f32 v{R + 1}, v88, v87
        v_lshrrev_b32 v89, 16, v89
        v_subrev_u32 v89, {DMIN}, v89
        v_lshlrev_b32 v89, 5, v89
        v_mul_u32_u24 v90, s49, v{16 + p}
        v_lshrrev_b32 v90, 20, v90
        v_mul_u32_u24 v91, {BN}, v90
        v_sub_u32 v91, v{16 + p}, v91
        v_lshl_or_b32 v{R + 2}, v91, 16, v89
        v_lshlrev_b32 v{68 + p}, 2, v90
        s_mov_b64 exec, vcc
        ds_add_rtn_u32 v{R + 3}, v{68 + p}, v7
        s_mov_b64 exec, -1''')
    a(f'''
    s_waitcnt lgkmcnt(0)
    s_barrier
    v_lshlrev_b32 v4, 2, v1
    ds_read_b32 v5, v4
    s_waitcnt lgkmcnt(0)
    v_mov_b32 v6, v5
    ''')
    scan64(a, 6)
    a('v_sub_u32 v5, v6, v5')
    for p in range(5):
        a(f'ds_bpermute_b32 v{74 + p}, v{68 + p}, v5')
    a(f'''
    s_cmp_lg_u32 s26, 0
    s_cbranch_scc1 K1_BIN_NOOFF
    s_lshl_b32 s50, s27, 2
    s_add_u32 s50, s50, {OFFS_OFF}
    v_lshlrev_b32 v4, 10, v1
    buffer_store_dword v5, v4, s[40:43], s50 offen {st}
    v_cmp_eq_u32 vcc, 63, v1
    s_mov_b64 exec, vcc
    buffer_store_dword v6, v4, s[40:43], s50 offen offset:1024 {st}
    s_mov_b64 exec, -1
    K1_BIN_NOOFF:
    s_mul_i32 s51, s27, {CHUNK * 12}
    s_add_u32 s51, s51, {RECS_OFF}
    s_waitcnt lgkmcnt(0)
    ''')
    for p in range(5):
        R = 48 + 4 * p
        a(f'''v_add_u32 v{74 + p}, v{74 + p}, v{R + 3}
        v_mul_u32_u24 v{74 + p}, 12, v{74 + p}''')
    for p in range(5):
        R = 48 + 4 * p
        a(f'''s_mov_b64 exec, {sr(60 + 2 * p, 2)}
        buffer_store_dwordx3 {vr(R, 3)}, v{74 + p}, s[40:43], s51 offen {st}''')
    a('s_endpgm')

    a('K1_GT:')
    a(f'''
    s_sub_u32 s27, s2, {NG + NCHUNK}
    s_lshl_b32 s27, s27, 8
    v_add_u32 v4, s27, v0
    s_waitcnt lgkmcnt(0)
    s_load_dwordx8 s[28:35], s[16:17], 0
    s_add_u32 s40, s24, {MISC_BASE}
    s_addc_u32 s41, s25, 0
    s_mov_b32 s42, 64000
    s_mov_b32 s43, 0x00020000
    v_add_u32 v5, {DMIN}, v4
    v_lshlrev_b32 v5, 16, v5
    v_rcp_f32 v6, v5
    v_mul_f32 v7, 0x40490fdb, v5
    ''')
    bf16_round1(a, 7)
    a('v_mul_f32 v7, 0x3e4ccccd, v7')
    bf16_round1(a, 7)
    a('''v_mul_f32 v7, 0x3e22f983, v7
    v_cos_f32 v7, v7''')
    bf16_round1(a, 7)
    a('v_add_f32 v7, 1.0, v7')
    bf16_round1(a, 7)
    a(f'''v_mul_f32 v7, 0.5, v7
    v_cmp_gt_u32 vcc, {NROWS}, v4
    v_cndmask_b32 v7, 0, v7, vcc
    s_waitcnt lgkmcnt(0)''')
    for k2 in range(8):
        a(f'''s_lshl_b32 s36, s{28 + k2}, 16
        s_and_b32 s37, s{28 + k2}, 0xffff0000
        v_mul_f32 v8, s36, v5
        v_mul_f32 v9, s37, v5''')
        bf16_round_pair(a, 8, 9, 10, '0xffff0000')
        a('''v_mul_f32 v8, 0x3e22f983, v8
        v_mul_f32 v9, 0x3e22f983, v9
        v_rndne_f32 v10, v8
        v_rndne_f32 v11, v9
        v_sub_f32 v8, v8, v10
        v_sub_f32 v9, v9, v11
        v_sin_f32 v8, v8
        v_sin_f32 v9, v9''')
        bf16_round_pair(a, 8, 9, 10, '0xffff0000')
        a('''v_mul_f32 v8, v8, v6
        v_mul_f32 v9, v9, v6''')
        bf16_round_pair(a, 8, 9, 10, '0xffff0000')
        a(f'''v_mul_f32 v8, v8, v7
        v_mul_f32 v9, v9, v7
        v_cvt_pk_bf16_f32 v{16 + k2}, v8, v9''')
    a(f'''v_lshlrev_b32 v4, 5, v4
    buffer_store_dwordx4 v[16:19], v4, s[40:43], 0 offen {st}
    buffer_store_dwordx4 v[20:23], v4, s[40:43], 0 offen offset:16 {st}
    K1_END:
    s_endpgm''')
    return a


def gen_k2():
    a = Asm()
    DM = 8
    DT = 24
    W = 28
    BW = 52
    A = 64
    M = [68, 76]
    RH = 84
    ACC = 96
    T = 104
    GA, QN = 66, 67
    vMeta, vGa, vQn = 118, 119, 120
    vLM, vLT, vQ8, vMask, vOb = 121, 122, 123, 124, 125
    vX = 126
    REC = 8
    GS = 68
    WR = 84

    a(f'''
    s_cmp_ge_u32 s2, 256
    s_cbranch_scc1 K2_END
    s_load_dwordx2 s[8:9], s[0:1], 0
    s_load_dwordx4 s[12:15], s[0:1], 56
    s_load_dwordx2 s[24:25], s[0:1], 80
    v_and_b32 v1, 63, v0
    v_lshrrev_b32 v2, 4, v1
    v_and_b32 v3, 15, v1
    v_lshrrev_b32 v4, 6, v0
    v_readfirstlane_b32 s30, v4
    s_and_b32 s26, s2, 3
    s_lshr_b32 s27, s2, 3
    s_lshl_b32 s27, s27, 1
    s_bfe_u32 s3, s2, 0x10002
    s_add_u32 s27, s27, s3
    s_mul_i32 s28, s27, {BN}
    s_sub_u32 s29, {N}, s28
    s_min_u32 s29, s29, {BN}
    s_mul_i32 s4, s26, {TABM_SLICE}
    s_mul_i32 s5, s26, {TABT_SLICE}
    s_add_u32 s5, s5, {TABT_BASE}
    v_lshlrev_b32 v5, 4, v0
    v_lshrrev_b32 v6, 2, v0
    v_lshlrev_b32 v7, 2, v6
    s_lshl_b32 s6, s27, 10
    s_add_u32 s6, s6, {OFFS_OFF}
    s_movk_i32 s56, 0x4000
    s_mov_b32 s57, 0x8000
    s_mov_b32 s58, 0xc000
    v_mov_b32 v100, 0
    v_mov_b32 v101, 0
    s_waitcnt lgkmcnt(0)
    s_add_u32 s40, s24, {MISC_BASE}
    s_addc_u32 s41, s25, 0
    s_mov_b32 s42, {MISC_SIZE}
    s_mov_b32 s43, 0x00020000
    v_cmp_gt_u32 vcc, {NCHUNK * 4}, v0
    s_mov_b64 exec, vcc
    buffer_load_dword v100, v7, s[40:43], s6 offen
    buffer_load_dword v101, v7, s[40:43], s6 offen offset:1024
    s_mov_b64 exec, -1
    buffer_load_dwordx4 {vr(GS, 4)}, v5, s[40:43], 0 offen
    buffer_load_dwordx4 {vr(GS + 4, 4)}, v5, s[40:43], s56 offen
    buffer_load_dwordx4 {vr(GS + 8, 4)}, v5, s[40:43], s57 offen
    buffer_load_dwordx4 {vr(GS + 12, 4)}, v5, s[40:43], s58 offen
    s_add_u32 s32, s24, s4
    s_addc_u32 s33, s25, 0
    s_mov_b32 s34, {TABM_SLICE}
    s_mov_b32 s35, 0x00020000
    s_add_u32 s36, s24, s5
    s_addc_u32 s37, s25, 0
    s_mov_b32 s38, {TABT_SLICE}
    s_mov_b32 s39, 0x00020000
    ''')
    srd(a, 44, 's8', 's9', N * 1024)
    srd(a, 48, 's14', 's15', N * 1024)
    srd(a, 52, 's12', 's13', 16 * 768)
    a(f'''
    s_lshl_b32 s7, s26, 6
    v_mul_u32_u24 v102, 3072, v2
    v_lshl_add_u32 v102, v3, 2, v102
    ''')
    for ty in range(3):
        for kk in range(4):
            a(f'buffer_load_dword v{WR + ty * 4 + kk}, v102, s[52:55], s7 offen offset:{kk * 768 + ty * 256}')
    a(f'''
    v_mov_b32 v104, 0xffff
    v_mov_b32 v105, 0
    v_mov_b32 v106, 0xffff
    v_mov_b32 v107, 0
    v_add_u32 v103, {L_META}, v5
    ds_write_b128 v103, v[104:107]
    ds_write_b128 v103, v[104:107] offset:16384
    v_cmp_gt_u32 vcc, {S * 8 // 16 - 2048}, v0
    s_mov_b64 exec, vcc
    ds_write_b128 v103, v[104:107] offset:32768
    s_mov_b64 exec, -1
    v_mov_b32 v108, {NULL_GA | (NULL_GA << 16)}
    v_mov_b32 v109, v108
    v_mov_b32 v110, v108
    v_mov_b32 v111, v108
    v_add_u32 v103, {L_GA}, v5
    v_cmp_gt_u32 vcc, {S * 2 // 16}, v0
    s_mov_b64 exec, vcc
    ds_write_b128 v103, v[108:111]
    s_mov_b64 exec, -1
    v_mov_b32 v112, 0
    v_mov_b32 v113, 0
    v_mov_b32 v114, 0
    v_mov_b32 v115, 0
    v_add_u32 v103, {L_CARRY}, v5
    v_cmp_gt_u32 vcc, {(L_START - L_CARRY) // 16}, v0
    s_mov_b64 exec, vcc
    ds_write_b128 v103, v[112:115]
    s_mov_b64 exec, -1
    v_mov_b32 v108, -1
    v_mov_b32 v109, -1
    v_mov_b32 v110, -1
    v_mov_b32 v111, -1
    v_add_u32 v103, {L_QN}, v5
    v_cmp_gt_u32 vcc, {(L_META - L_QN) // 16}, v0
    s_mov_b64 exec, vcc
    ds_write_b128 v103, v[108:111]
    s_mov_b64 exec, -1
    ''')
    a(f'''
    v_and_b32 v102, 3, v0
    v_mul_u32_u24 v103, {CHUNK}, v6
    s_mov_b32 s59, {RECS_OFF}
    s_waitcnt vmcnt(16)
    v_add_u32 v100, v100, v102
    v_sub_u32 v101, v101, v100
    v_add_u32 v103, v103, v100
    v_mul_u32_u24 v103, 12, v103
    ''')
    for p in range(PM + 1):
        a(f'v_cmp_lt_i32 {sr(60 + 2 * p, 2)}, {4 * p}, v101')
    for p in range(PM):
        a(f'''s_mov_b64 exec, {sr(60 + 2 * p, 2)}
        s_cbranch_execz K2_RL_DONE
        buffer_load_dwordx3 {vr(REC + 4 * p, 3)}, v103, s[40:43], s59 offen offset:{48 * p}''')
    a(f'''
    K2_RL_DONE:
    s_mov_b64 exec, -1
    s_mov_b32 s4, 0x05040100
    s_mov_b32 s5, 0x07060302
    v_mov_b32 v104, 1
    v_mov_b32 v105, {L_FLAG}
    s_waitcnt lgkmcnt(0)
    s_barrier
    s_mov_b64 exec, {sr(60 + 2 * PM, 2)}
    ds_write_b32 v105, v104
    s_mov_b64 exec, -1
    s_waitcnt vmcnt(0)
    ds_write_b128 v5, {vr(GS, 4)}
    ds_write_b128 v5, {vr(GS + 4, 4)} offset:16384
    ds_write_b128 v5, {vr(GS + 8, 4)} offset:32768
    ds_write_b128 v5, {vr(GS + 12, 4)} offset:49152
    ''')
    HA = 106
    for p in range(PM):
        R = REC + 4 * p
        a(f'''s_mov_b64 exec, {sr(60 + 2 * p, 2)}
        s_cbranch_execz K2_H_DONE
        v_lshrrev_b32 v{HA + p}, 14, v{R + 2}
        v_and_b32 v{HA + p}, -4, v{HA + p}
        v_add_u32 v{HA + p}, {L_HIST}, v{HA + p}
        ds_add_rtn_u32 v{R + 3}, v{HA + p}, v104''')
    a('''K2_H_DONE:
    s_mov_b64 exec, -1''')
    for ty in range(3):
        s = WR + ty * 4
        for pa, sel in ((0, 's4'), (1, 's5')):
            d = BW + (ty * 2 + pa) * 2
            a(f'''v_perm_b32 v{d}, v{s + 1}, v{s}, {sel}
            v_perm_b32 v{d + 1}, v{s + 3}, v{s + 2}, {sel}''')
    a(f'''
    v_mul_u32_u24 v68, 12, v1
    v_add_u32 v69, {L_HIST}, v68
    v_mul_u32_u24 v70, 3, v1
    s_waitcnt lgkmcnt(0)
    s_barrier
    ds_read_b32 v72, v69
    ds_read_b32 v73, v69 offset:4
    ds_read_b32 v74, v69 offset:8
    ds_read_b32 v75, v105
    s_waitcnt lgkmcnt(0)
    ''')
    for x in range(3):
        a(f'''v_add_u32 v{72 + x}, 3, v{72 + x}
        v_lshrrev_b32 v{72 + x}, 2, v{72 + x}
        v_max_u32 v{72 + x}, 1, v{72 + x}
        v_add_u32 v{76 + x}, {x}, v70
        v_cmp_gt_u32 {sr(84 + 2 * x, 2)}, s29, v{76 + x}
        v_cndmask_b32 v{72 + x}, 0, v{72 + x}, {sr(84 + 2 * x, 2)}''')
    a('v_add3_u32 v79, v72, v73, v74')
    a('v_mov_b32 v80, v79')
    scan64(a, 80)
    a(f'''
    v_readlane_b32 s31, v80, 63
    v_readfirstlane_b32 s3, v75
    v_sub_u32 v81, v80, v79
    v_add_u32 v82, v81, v72
    v_add_u32 v83, v82, v73
    s_cmp_gt_u32 s31, {QCAP}
    s_cbranch_scc1 K2_FALLBACK
    s_cmp_lg_u32 s3, 0
    s_cbranch_scc1 K2_FALLBACK
    ds_write_b32 v69, v81 offset:{L_START - L_HIST}
    ds_write_b32 v69, v82 offset:{L_START - L_HIST + 4}
    ds_write_b32 v69, v83 offset:{L_START - L_HIST + 8}
    ''')
    for x in range(3):
        a(f'''v_add_u32 v{81 + x}, {L_QN}, v{81 + x}
        s_mov_b64 exec, {sr(84 + 2 * x, 2)}
        ds_write_b8 v{81 + x}, v{76 + x}''')
    a('s_mov_b64 exec, -1')
    SQ = 68
    for p in range(PM):
        a(f'''s_mov_b64 exec, {sr(60 + 2 * p, 2)}
        s_cbranch_execz K2_S1_DONE
        ds_read_b32 v{SQ + p}, v{HA + p} offset:{L_START - L_HIST}''')
    a('''K2_S1_DONE:
    s_waitcnt lgkmcnt(0)''')
    for p in range(PM):
        R = REC + 4 * p
        a(f'''s_mov_b64 exec, {sr(60 + 2 * p, 2)}
        s_cbranch_execz K2_S2_DONE
        v_lshrrev_b32 v84, 2, v{R + 3}
        v_add_u32 v84, v84, v{SQ + p}
        v_and_b32 v85, 3, v{R + 3}
        v_and_b32 v86, 3, v84
        v_lshl_or_b32 v85, v85, 2, v86
        v_lshrrev_b32 v86, 2, v84
        v_lshl_or_b32 v85, v86, 4, v85
        v_add_u32 v84, {L_QN}, v84
        v_lshlrev_b32 v86, 3, v85
        v_add_u32 v86, {L_META}, v86
        v_lshlrev_b32 v85, 1, v85
        v_add_u32 v85, {L_GA}, v85
        ds_write_b64 v86, {vr(R, 2)}
        ds_write_b16 v85, v{R + 2}
        ds_write_b8_d16_hi v84, v{R + 2}''')
    a(f'''
    K2_S2_DONE:
    s_mov_b64 exec, -1
    s_add_u32 s31, s31, 3
    s_lshr_b32 s31, s31, 2
    s_mul_i32 s16, s30, s31
    s_add_u32 s17, s16, s31
    s_lshr_b32 s16, s16, 4
    s_lshr_b32 s17, s17, 4
    s_sub_u32 s18, s17, s16
    s_lshl_b32 s3, s16, 7
    s_add_u32 s3, s3, {L_META}
    v_lshl_add_u32 v{vMeta}, v2, 5, s3
    s_lshl_b32 s3, s16, 5
    s_add_u32 s3, s3, {L_GA}
    v_lshl_add_u32 v{vGa}, v3, 1, s3
    s_lshl_b32 s3, s16, 2
    s_add_u32 s3, s3, {L_QN}
    v_mov_b32 v{vQn}, s3
    v_lshlrev_b32 v{vLM}, 4, v3
    v_lshlrev_b32 v{vLT}, 2, v3
    v_lshlrev_b32 v{vQ8}, 3, v2
    v_mov_b32 v{vMask}, 0xffff0000
    v_lshlrev_b32 v{vOb}, 2, v1
    v_add_u32 v{vOb}, {L_OB}, v{vOb}
    s_movk_i32 s19, 256
    s_mov_b32 s22, 0
    s_mov_b32 s23, 0
    s_mov_b32 s10, 0
    s_waitcnt lgkmcnt(0)
    s_barrier
    s_cmp_eq_u32 s18, 0
    s_cbranch_scc1 K2_STREAM_DONE
    ''')
    a(f'''
    ds_read_b128 {vr(M[0], 4)}, v{vMeta}
    ds_read_b128 {vr(M[0] + 4, 4)}, v{vMeta} offset:16
    ds_read_u16 v{T}, v{vGa}
    ds_read_b32 v{T + 1}, v{vQn}
    ds_read_b128 {vr(M[1], 4)}, v{vMeta} offset:128
    ds_read_b128 {vr(M[1] + 4, 4)}, v{vMeta} offset:144
    ds_read_u16 v{GA}, v{vGa} offset:32
    ds_read_b32 v{QN}, v{vQn} offset:4
    s_waitcnt lgkmcnt(4)
    v_add_u32 v{T}, v{T}, v{vQ8}
    ds_read_b64 {vr(A, 2)}, v{T}
    v_readfirstlane_b32 s20, v{T + 1}
    ''')

    def gather(r, m):
        a(f'''v_mad_u32_u16 v{T + 12}, v{m + 2 * r}, s19, v{vLM}
        v_mad_u32_u16 v{T + 13}, v{m + 2 * r}, 64, v{vLT}
        buffer_load_dwordx4 {vr(DM + 4 * r, 4)}, v{T + 12}, s[32:35], 0 offen
        buffer_load_dword v{DT + r}, v{T + 13}, s[36:39], 0 offen''')

    for r in range(4):
        gather(r, M[0])
    for x in range(8):
        a(f'v_mov_b32 v{ACC + x}, 0')
    a(f'''
    s_and_b32 s3, s20, 0xff
    s_lshl_b32 s3, s3, 2
    s_add_u32 s3, s3, {L_START}
    v_mov_b32 v{T + 2}, s3
    ds_read_b32 v{T + 2}, v{T + 2}
    s_waitcnt lgkmcnt(0)
    v_readfirstlane_b32 s3, v{T + 2}
    s_lshr_b32 s3, s3, 2
    s_cmp_ge_u32 s3, s16
    s_cbranch_scc1 K2_LOOP
    s_mov_b32 s22, 1
    s_mov_b32 s23, s30
    K2_FINDK:
    s_sub_u32 s23, s23, 1
    s_mul_i32 s4, s23, s31
    s_lshr_b32 s4, s4, 4
    s_cmp_gt_u32 s4, s3
    s_cbranch_scc1 K2_FINDK
    ''')

    def acc(c, pa):
        return ACC + c * 2 + pa

    def reduce4():
        for pa in range(2):
            a(f'v_permlane32_swap_b32 v{acc(0, pa)}, v{acc(2, pa)}')
            a(f'v_permlane32_swap_b32 v{acc(1, pa)}, v{acc(3, pa)}')
        for pa in range(2):
            a(f'v_add_f32 v{acc(0, pa)}, v{acc(0, pa)}, v{acc(2, pa)}')
            a(f'v_add_f32 v{acc(1, pa)}, v{acc(1, pa)}, v{acc(3, pa)}')
        for pa in range(2):
            a(f'v_permlane16_swap_b32 v{acc(0, pa)}, v{acc(1, pa)}')
        for pa in range(2):
            a(f'v_add_f32 v{acc(0, pa)}, v{acc(0, pa)}, v{acc(1, pa)}')

    def carry_add(slot):
        a(f'''s_lshl_b32 s3, {slot}, 9
        s_add_u32 s3, s3, {L_CARRY - L_OB}
        v_add_u32 v{vX}, s3, v{vOb}
        ds_add_f32 v{vX}, v{acc(0, 0)}
        ds_add_f32 v{vX}, v{acc(0, 1)} offset:256''')

    def body(e):
        me, mo = M[e], M[1 - e]
        a('s_waitcnt lgkmcnt(0)')
        for x in range(6):
            a(f'v_mfma_f32_16x16x16_bf16 {vr(W + 4 * x, 4)}, {vr(A, 2)}, {vr(BW + 2 * x, 2)}, 0')
        a(f'''v_add_u32 v{T}, v{GA}, v{vQ8}
        v_readfirstlane_b32 s21, v{QN}
        ds_read_b64 {vr(A, 2)}, v{T}
        ds_read_u16 v{GA}, v{vGa} offset:{64 + 32 * e}
        ds_read_b32 v{QN}, v{vQn} offset:{8 + 4 * e}''')
        for r in range(4):
            a(f'''v_and_b32 v{RH + 3 * r}, v{vMask}, v{me + 2 * r}
            v_and_b32 v{RH + 3 * r + 1}, v{vMask}, v{me + 2 * r + 1}
            v_lshlrev_b32 v{RH + 3 * r + 2}, 16, v{me + 2 * r + 1}''')
        a(f'''ds_read_b128 {vr(me, 4)}, v{vMeta} offset:{256 + 128 * e}
        ds_read_b128 {vr(me + 4, 4)}, v{vMeta} offset:{272 + 128 * e}
        s_lshr_b32 s4, s20, 8
        s_lshl_b32 s5, s21, 24
        s_or_b32 s4, s4, s5
        s_xor_b32 s11, s4, s20
        s_sub_u32 s18, s18, 1
        s_cmp_eq_u32 s18, 0
        s_cselect_b32 s34, 0, s34
        s_cselect_b32 s38, 0, s38''')
        for r in range(4):
            a('s_waitcnt vmcnt(6)')
            U = lambda x, pa: T + 2 * x + (1 - pa)
            for x in range(5):
                s = DM + 4 * r + x if x < 4 else DT + r
                a(f'v_lshlrev_b32 v{U(x, 0)}, 16, v{s}')
                a(f'v_and_b32 v{U(x, 1)}, v{vMask}, v{s}')
            gather(r, mo)
            w = lambda ty, pa: W + (ty * 2 + pa) * 4 + r
            for pa in range(2):
                a(f'v_mul_f32 v{U(5, pa)}, v{U(3, pa)}, v{w(2, pa)}')
            for pa in range(2):
                a(f'v_fmac_f32 v{acc(0, pa)}, v{U(4, pa)}, v{w(0, pa)}')
            for k in range(3):
                for pa in range(2):
                    a(f'v_fmac_f32 v{acc(1 + k, pa)}, v{U(k, pa)}, v{w(1, pa)}')
            for k in range(3):
                for pa in range(2):
                    a(f'v_fmac_f32 v{acc(1 + k, pa)}, v{U(5, pa)}, v{RH + 3 * r + k}')
            L = f'K2_NF_{e}_{r}'
            a(f'''s_and_b32 s3, s11, {0xff << (8 * r):#x}
            s_cbranch_scc0 {L}''')
            reduce4()
            a(f'''s_cmp_eq_u32 s22, 0
            s_cbranch_scc1 {L}_n''')
            carry_add('s23')
            a(f'''s_mov_b32 s22, 0
            s_branch {L}_z
            {L}_n:
            s_bfe_u32 s3, s20, {(8 << 16) | (8 * r):#x}
            s_lshl_b32 s3, s3, 8
            v_add_u32 v{vX}, s3, v{vOb}
            v_cvt_pk_bf16_f32 v{acc(1, 0)}, v{acc(0, 0)}, v{acc(0, 1)}
            ds_write_b32 v{vX}, v{acc(1, 0)}
            {L}_z:''')
            for x in range(8):
                a(f'v_mov_b32 v{ACC + x}, 0')
            a(f'{L}:')

    a('K2_LOOP:')
    body(0)
    a('''s_cmp_eq_u32 s18, 0
    s_cbranch_scc1 K2_LOOP_END
    s_mov_b32 s20, s21''')
    body(1)
    a(f'''s_cmp_eq_u32 s18, 0
    s_cbranch_scc1 K2_LOOP_END
    s_mov_b32 s20, s21
    v_add_u32 v{vMeta}, 256, v{vMeta}
    v_add_u32 v{vGa}, 64, v{vGa}
    v_add_u32 v{vQn}, 8, v{vQn}
    s_branch K2_LOOP
    K2_LOOP_END:
    s_and_b32 s3, s11, 0xff000000
    s_cbranch_scc1 K2_STREAM_DONE
    s_lshr_b32 s21, s20, 24
    s_cmp_eq_u32 s21, 0xff
    s_cbranch_scc1 K2_STREAM_DONE
    ''')
    reduce4()
    a('''s_cmp_eq_u32 s22, 0
    s_cselect_b32 s23, s30, s23
    s_cselect_b32 s10, 1, 0''')
    carry_add('s23')
    SV = 8
    OBR = 28
    a(f'''
    K2_STREAM_DONE:
    s_waitcnt vmcnt(0)
    v_lshrrev_b32 v4, 2, v0
    v_lshlrev_b32 v4, 8, v4
    v_and_b32 v5, 3, v0
    v_lshl_or_b32 v4, v5, 4, v4
    s_lshl_b32 s3, s28, 10
    s_lshl_b32 s4, s26, 6
    s_add_u32 s3, s3, s4
    v_add_u32 v4, s3, v4
    v_add_u32 v5, 0x10000, v4
    v_add_u32 v6, 0x20000, v4
    s_lshl_b32 s5, s29, 4
    v_cmp_gt_u32 s[60:61], s5, v0
    s_sub_i32 s5, s5, 1024
    v_cmp_gt_i32 s[62:63], s5, v0
    s_sub_i32 s5, s5, 1024
    v_cmp_gt_i32 s[64:65], s5, v0
    buffer_load_dwordx4 {vr(SV, 4)}, v4, s[44:47], 0 offen
    buffer_load_dwordx4 {vr(SV + 4, 4)}, v5, s[44:47], 0 offen
    buffer_load_dwordx4 {vr(SV + 8, 4)}, v6, s[44:47], 0 offen
    s_waitcnt lgkmcnt(0)
    s_barrier
    s_cmp_eq_u32 s10, 0
    s_cbranch_scc1 K2_NOFIN
    s_lshl_b32 s3, s30, 9
    s_add_u32 s3, s3, {L_CARRY - L_OB}
    v_add_u32 v{vX}, s3, v{vOb}
    ds_read_b32 v{T}, v{vX}
    ds_read_b32 v{T + 1}, v{vX} offset:256
    s_lshl_b32 s3, s21, 8
    v_add_u32 v{vX}, s3, v{vOb}
    s_waitcnt lgkmcnt(0)
    v_cvt_pk_bf16_f32 v{T}, v{T}, v{T + 1}
    ds_write_b32 v{vX}, v{T}
    s_waitcnt lgkmcnt(0)
    K2_NOFIN:
    s_barrier
    v_lshlrev_b32 v7, 4, v0
    v_add_u32 v7, {L_OB}, v7
    ds_read_b128 {vr(OBR, 4)}, v7
    ds_read_b128 {vr(OBR + 4, 4)}, v7 offset:16384
    ds_read_b128 {vr(OBR + 8, 4)}, v7 offset:32768
    s_waitcnt vmcnt(0) lgkmcnt(0)
    ''')
    for it in range(3):
        for x in range(4):
            s, o = SV + it * 4 + x, OBR + it * 4 + x
            a(f'''v_lshlrev_b32 v{T}, 16, v{s}
            v_and_b32 v{T + 1}, v{vMask}, v{s}
            v_lshlrev_b32 v{T + 2}, 16, v{o}
            v_and_b32 v{T + 3}, v{vMask}, v{o}
            v_add_f32 v{T}, v{T}, v{T + 2}
            v_add_f32 v{T + 1}, v{T + 1}, v{T + 3}
            v_cvt_pk_bf16_f32 v{s}, v{T}, v{T + 1}''')
    for it in range(3):
        a(f'''s_mov_b64 exec, {sr(60 + 2 * it, 2)}
        buffer_store_dwordx4 {vr(SV + 4 * it, 4)}, v{4 + it}, s[48:51], 0 offen {OPT['out_store']}''')
    a('''s_endpgm
    K2_FALLBACK:
    K2_END:
    s_endpgm''')
    return a


def kernel_text(name, a):
    n = a.fix_hazards()
    nv, ns = a.max_regs()
    nv4 = (nv + 3) // 4 * 4
    body = f'.globl {name}\n.p2align 8\n.type {name},@function\n{name}:\n' + a.text()
    desc = f'''.p2align 6
.amdhsa_kernel {name}
  .amdhsa_next_free_vgpr {nv4}
  .amdhsa_next_free_sgpr {max(ns, 16)}
  .amdhsa_accum_offset {nv4}
  .amdhsa_group_segment_fixed_size 0
  .amdhsa_kernarg_size 88
  .amdhsa_user_sgpr_count 2
  .amdhsa_user_sgpr_kernarg_segment_ptr 1
  .amdhsa_system_sgpr_workgroup_id_x 1
  .amdhsa_float_denorm_mode_32 3
.end_amdhsa_kernel
'''
    print(f'{name}: vgpr {nv} sgpr {ns} nops inserted {n} instrs {sum(1 for k, _ in a.items if k == "i")}',
          file=sys.stderr)
    return body, desc


def main(out):
    hdr = open('cdna_kernels/' + NAME + '.s.ref').read().split('; Override launch')[0]
    launches = [
        f'; @launch kernel=painn_pre_kernel grid=({NK1},1,1) block=(256,1,1) lds=12288',
        f'; @launch kernel=painn_main_kernel grid=(256,1,1) block=(1024,1,1) lds={L_TOTAL}',
    ]
    b1, d1 = kernel_text('painn_pre_kernel', gen_k1())
    b2, d2 = kernel_text('painn_main_kernel', gen_k2())
    txt = hdr + '\n'.join(launches) + '\n.amdgcn_target "amdgcn-amd-amdhsa--gfx950"\n.text\n' + b1 + b2
    txt += '.section .rodata,"a"\n' + d1 + d2
    open(out, 'w').write(txt)


if __name__ == '__main__':
    main(sys.argv[1] if len(sys.argv) > 1 else 'v1.s')
```

```python
import sys
from asmlib import Asm, vr, sr

N = 10000
E = 320000
NAME = 'standalone__molecular_angular_painn__graph'

TAB = N * 256
TABS_BASE = 4 * TAB
MISC_BASE = 5 * TAB
GT_OFF = 0
WRF_OFF = 65536
OFFS_OFF = 77824
RECS_OFF = 98304
NCH = 64
CHUNK = 5120
MISC_SIZE = RECS_OFF + NCH * CHUNK * 12
BN = 157
SN = 40
DMIN = 0x38D2
GTOP = 0x40A1
NFAST = 1186

NG = 157
R_BIN = NG
R_GT = NG + NCH
R_WRF = R_GT + 4
NK1 = R_WRF + 2

G_FR1 = 0
G_FR2 = 32768
G_H = 131072
K1_LDS = 147456
B_POS = 0
B_HIST = 60416
B_STG = 61440

L_G = 0
L_HIST = 38912
L_START = 39680
L_ST = 40448
L_FLAG = L_ST + 128
L_QN = 40704
L_GA = 42240
L_WRF = 53760
L_CARRY = 59904
L_OB = 76288
L_REC = 117248
L_TOTAL = 163840
NBLK = 360
QCAP = 4 * (NBLK - 3)

OPT = dict(st='sc1', out_store='', stream=0, prio=1, round_phi=1, k1ld='', k2ld='')
DBG_BASE = 32 << 20
MASK = '0xffff0000'


def stamp(a, idx, vreg, real=False):
    if not OPT.get('stamps'):
        return
    a(f'''{'s_memrealtime' if real else 's_memtime'} s[92:93]
    s_waitcnt lgkmcnt(0)
    v_writelane_b32 v{vreg}, s92, {idx}''')


def stamp_out(a, vreg, wave_s, kidx, nw):
    if not OPT.get('stamps'):
        return
    a('s_waitcnt vmcnt(0)')
    stamp(a, 8, vreg)
    stamp(a, 9, vreg, True)
    a(f'''s_mov_b64 exec, -1
    s_add_u32 s96, s24, {DBG_BASE + kidx * (4 << 20)}
    s_addc_u32 s97, s25, 0
    s_mov_b32 s98, {4 << 20}
    s_mov_b32 s99, 0x00020000
    s_mul_i32 s94, s2, {nw}
    s_add_u32 s94, s94, {wave_s}
    s_lshl_b32 s94, s94, 8
    v_and_b32 v1, 63, v0
    v_lshlrev_b32 v1, 2, v1
    buffer_store_dword v{vreg}, v1, s[96:99], s94 offen''')


def srd(a, d, lo, hi, size):
    a(f'''s_mov_b32 s{d}, {lo}
    s_mov_b32 s{d+1}, {hi}
    s_mov_b32 s{d+2}, {size}
    s_mov_b32 s{d+3}, 0x00020000''')


def srd_ws(a, d, off, size):
    a(f'''s_add_u32 s{d}, s24, {off}
    s_addc_u32 s{d+1}, s25, 0
    s_mov_b32 s{d+2}, {size}
    s_mov_b32 s{d+3}, 0x00020000''')


def bf16_round_pair(a, x, y, tmp):
    a(f'''v_cvt_pk_bf16_f32 v{tmp}, v{x}, v{y}
    v_lshlrev_b32 v{x}, 16, v{tmp}
    v_and_b32 v{y}, {MASK}, v{tmp}''')


def bf16_round1(a, x):
    a(f'''v_cvt_pk_bf16_f32 v{x}, v{x}, v{x}
    v_and_b32 v{x}, {MASK}, v{x}''')


def scan64(a, v):
    for sh in (1, 2, 4, 8):
        a(f'v_add_u32_dpp v{v}, v{v}, v{v} row_shr:{sh} row_mask:0xf bank_mask:0xf bound_ctrl:0')
    a(f'v_add_u32_dpp v{v}, v{v}, v{v} row_bcast:15 row_mask:0xa bank_mask:0xf')
    a(f'v_add_u32_dpp v{v}, v{v}, v{v} row_bcast:31 row_mask:0xc bank_mask:0xf')


def gen_k1():
    a = Asm()
    st = OPT['st']
    ld = OPT['k1ld']
    SV = 255
    a(f'''
    s_cmp_ge_u32 s2, {NK1}
    s_cbranch_scc1 K1_END
    s_load_dwordx16 s[8:23], s[0:1], 0
    s_load_dwordx2 s[24:25], s[0:1], 80
    v_and_b32 v1, 63, v0
    v_lshrrev_b32 v2, 4, v1
    v_and_b32 v3, 15, v1
    v_lshrrev_b32 v4, 6, v0
    v_readfirstlane_b32 s26, v4
    s_mov_b32 s54, 0x05040100
    s_mov_b32 s55, 0x07060302
    s_cmp_ge_u32 s2, {R_GT}
    s_cbranch_scc1 K1_MISC
    s_cmp_ge_u32 s2, {R_BIN}
    s_cbranch_scc1 K1_BIN
    ''')
    SF = 16
    W1R = 32
    W2R = 48
    VV = 96
    PO = 120
    AC = 152
    FB = 216
    TM = 248
    a(f'''
    s_and_b32 s27, s26, 3
    s_lshr_b32 s28, s26, 2
    s_lshl_b32 s29, s2, 2
    s_add_u32 s29, s29, s27
    s_lshl_b32 s30, s29, 4
    v_add_u32 v5, s30, v3
    v_lshlrev_b32 v5, 10, v5
    v_lshl_add_u32 v5, v2, 4, v5
    v_lshlrev_b32 v6, 4, v3
    v_lshl_add_u32 v7, v2, 11, v6
    v_mul_u32_u24 v8, 6144, v2
    v_add_u32 v8, v8, v6
    v_lshl_add_u32 v9, v2, 2, s30
    v_lshl_add_u32 v10, v9, 10, v6
    s_lshl_b32 s31, s28, 3
    v_add_u32 v10, s31, v10
    s_lshr_b32 s48, s26, 1
    s_lshl_b32 s48, s48, 13
    s_and_b32 s3, s26, 1
    s_lshl_b32 s4, s3, 10
    s_add_u32 s49, s48, s4
    s_lshl_b32 s3, s3, 3
    s_add_u32 s48, s48, s3
    v_lshlrev_b32 v11, 4, v1
    v_add_u32 v12, s48, v11
    ''')
    for x in range(3):
        a(f'''s_mul_i32 s3, s26, 3
        s_add_u32 s3, s3, {x}
        s_lshr_b32 s4, s3, 1
        s_and_b32 s3, s3, 1
        s_mul_i32 s5, s4, 43
        s_lshr_b32 s5, s5, 7
        s_mul_i32 s6, s5, 3
        s_sub_u32 s6, s4, s6
        s_mul_i32 s5, s5, 24576
        s_lshl_b32 s6, s6, 8
        s_add_u32 s5, s5, s6
        s_mul_i32 s6, s3, 3072
        s_add_u32 s{50 + x}, s5, s6
        s_lshl_b32 s4, s4, 13
        s_lshl_b32 s3, s3, 3
        s_add_u32 s4, s4, s3
        s_add_u32 s4, s4, {G_FR2}
        v_add_u32 v{13 + x}, s4, v11''')
    a('s_waitcnt lgkmcnt(0)')
    stamp(a, 0, SV, True)
    stamp(a, 1, SV)
    srd(a, 32, 's8', 's9', N * 1024)
    srd(a, 36, 's18', 's19', 32768)
    srd(a, 40, 's20', 's21', 98304)
    for ii in range(4):
        a(f'buffer_load_dwordx4 {vr(W1R + 4 * ii, 4)}, v7, s[36:39], s49 offen offset:{ii * 256}')
    for u in range(4):
        a(f'buffer_load_dwordx4 {vr(SF + 4 * u, 4)}, v5, s[32:35], 0 offen offset:{u * 64} {ld}')
    for x in range(3):
        for ii in range(4):
            a(f'buffer_load_dwordx4 {vr(W2R + 16 * x + 4 * ii, 4)}, v8, s[40:43], s{50 + x} offen offset:{ii * 768}')
    for r in range(4):
        for k in range(3):
            a(f'buffer_load_dwordx2 {vr(VV + (r * 3 + k) * 2, 2)}, v10, s[32:35], 0 offen '
              f'offset:{r * 1024 + (1 + k) * 256} {ld}')
    srd_ws(a, 44, 0, 5 * TAB)

    def half_unit(raw, po, addr):
        for t in range(8):
            c, pa = divmod(t, 2)
            sel = 's55' if pa else 's54'
            a(f'''v_perm_b32 v{po + 2 * t}, v{raw + 4 + c}, v{raw + c}, {sel}
            v_perm_b32 v{po + 2 * t + 1}, v{raw + 12 + c}, v{raw + 8 + c}, {sel}
            ds_write_b64 v{addr}, {vr(po + 2 * t, 2)} offset:{t * 1024}''')

    a('s_waitcnt vmcnt(28)')
    stamp(a, 2, SV)
    half_unit(W1R, PO, 12)
    a(f'''
    s_lshl_b32 s3, s28, 12
    v_add_u32 v4, s3, v11
    s_lshl_b32 s3, s27, 12
    s_add_u32 s3, s3, {G_H}
    v_add_u32 v5, s3, v11
    s_add_u32 s3, s3, s31
    v_lshl_add_u32 v7, v2, 10, v6
    v_add_u32 v7, s3, v7
    s_waitcnt lgkmcnt(0)
    s_barrier
    ''')
    order = [(u, tt) for u in range(4) for tt in range(4)]
    for n, (u, tt) in enumerate(order[:8]):
        a(f'ds_read_b128 {vr(FB + 4 * n, 4)}, v4 offset:{(u * 8 + tt) * 1024}')
    a('s_waitcnt vmcnt(24)')
    for n, (u, tt) in enumerate(order):
        rem = min(7, 15 - n)
        a(f's_waitcnt lgkmcnt({rem})')
        d = AC + 4 * tt
        c = '0' if u == 0 else vr(d, 4)
        a(f'v_mfma_f32_16x16x32_bf16 {vr(d, 4)}, {vr(FB + 4 * (n & 7), 4)}, {vr(SF + 4 * u, 4)}, {c}')
        if n + 8 < 16:
            u2, t2 = order[n + 8]
            a(f'ds_read_b128 {vr(FB + 4 * (n & 7), 4)}, v4 offset:{(u2 * 8 + t2) * 1024}')
    stamp(a, 3, SV)
    a('s_waitcnt vmcnt(20)')
    half_unit(W2R, PO + 16, 13)
    for r in range(4):
        for p in range(2):
            xe, xo = AC + 4 * (2 * p) + r, AC + 4 * (2 * p + 1) + r
            bf16_round_pair(a, xe, xo, TM)
            a(f'''v_mul_f32 v{TM + 1}, 0xbfb8aa3b, v{xe}
            v_mul_f32 v{TM + 2}, 0xbfb8aa3b, v{xo}
            v_exp_f32 v{TM + 1}, v{TM + 1}
            v_exp_f32 v{TM + 2}, v{TM + 2}
            v_add_f32 v{TM + 1}, 1.0, v{TM + 1}
            v_add_f32 v{TM + 2}, 1.0, v{TM + 2}
            v_rcp_f32 v{TM + 1}, v{TM + 1}
            v_rcp_f32 v{TM + 2}, v{TM + 2}
            v_mul_f32 v{TM + 1}, v{TM + 1}, v{xe}
            v_mul_f32 v{TM + 2}, v{TM + 2}, v{xo}
            v_cvt_pk_bf16_f32 v{W1R + 2 * r + p}, v{TM + 1}, v{TM + 2}''')
        a(f'ds_write_b64 v7, {vr(W1R + 2 * r, 2)} offset:{r * 256}')
    a('s_waitcnt vmcnt(16)')
    half_unit(W2R + 16, PO, 14)
    a('s_waitcnt vmcnt(12)')
    half_unit(W2R + 32, PO + 16, 15)
    a(f'''
    v_lshrrev_b32 v8, 2, v3
    s_mov_b32 s3, {TAB}
    v_mul_lo_u32 v8, v8, s3
    v_and_b32 v12, 3, v3
    v_lshl_add_u32 v8, v12, 4, v8
    v_lshl_add_u32 v8, v9, 8, v8
    s_lshl_b32 s3, s28, 7
    v_add_u32 v8, s3, v8
    v_lshl_add_u32 v9, v9, 8, v6
    v_add_u32 v9, {TABS_BASE}, v9
    v_add_u32 v12, {G_FR2}, v4
    v_add_u32 v13, {G_FR2 + 49152}, v4
    v_add_u32 v14, {G_FR2}, v11
    v_add_u32 v15, {G_FR2 + 49152}, v11
    s_waitcnt lgkmcnt(0)
    s_barrier
    s_cmp_ge_u32 s29, 625
    s_cbranch_scc1 K1_GEMM_END
    ''')
    stamp(a, 4, SV)
    for u in range(4):
        a(f'ds_read_b128 {vr(SF + 4 * u, 4)}, v5 offset:{u * 1024}')

    def gemm2(items, first_wait_extra):
        def rd(n):
            u, ty, tt, base, d = items[n]
            b = base[0] if u < 2 else base[1]
            a(f'ds_read_b128 {vr(FB + 4 * (n & 7), 4)}, v{b} offset:{(((u & 1) * 3 + ty) * 8 + tt) * 1024}')
        for n in range(8):
            rd(n)
        for n, (u, ty, tt, base, d) in enumerate(items):
            a(f's_waitcnt lgkmcnt({min(7, len(items) - 1 - n)})')
            c = '0' if u == 0 else vr(d, 4)
            a(f'v_mfma_f32_16x16x32_bf16 {vr(d, 4)}, {vr(SF + 4 * u, 4)}, {vr(FB + 4 * (n & 7), 4)}, {c}')
            if n + 8 < len(items):
                rd(n + 8)

    itv = [(u, ty, tt, (12, 13), AC + ((ty - 1) * 4 + tt) * 4) for u in range(4) for ty in (1, 2) for tt in range(4)]
    its = [(u, 0, t, (14, 15), AC + 32 + t * 4) for u in range(4) for t in range(8)]
    gemm2(itv, 0)
    a('''s_cmp_eq_u32 s28, 0
    s_cbranch_scc1 K1_EPI_V''')
    gemm2(its, 0)
    a('K1_EPI_V:')
    stamp(a, 5, SV)
    a('s_waitcnt vmcnt(0)')
    stamp(a, 6, SV)

    def encode(fields, out, tmp):
        if not OPT['stream']:
            for x in range(4):
                a(f'v_cvt_pk_bf16_f32 v{out + x}, v{fields[2 * x]}, v{fields[2 * x + 1]}')
            return
        for f in fields:
            a(f'v_add_u32 v{f}, 0x8000, v{f}')
        for h in range(2):
            f = fields[4 * h:4 * h + 4]
            for x in range(1, 4):
                a(f'v_sub_u32_sdwa v{f[x]}, v{f[x]}, v{f[x - 1]} dst_sel:DWORD dst_unused:UNUSED_PAD '
                  f'src0_sel:DWORD src1_sel:WORD_1')
        for x in range(4):
            a(f'v_perm_b32 v{out + x}, v{fields[2 * x + 1]}, v{fields[2 * x]}, s55')

    for r in range(4):
        for x in range(2):
            o = PO + ((r * 2 + x) & 3) * 4
            t0 = PO + 16 + ((r * 2 + x) & 1) * 8
            fa, fb = AC + (2 * x) * 4 + r, AC + (2 * x + 1) * 4 + r
            ra, rb = AC + (4 + 2 * x) * 4 + r, AC + (4 + 2 * x + 1) * 4 + r
            if OPT['round_phi']:
                bf16_round_pair(a, fa, fb, TM)
            for k in range(3):
                s = VV + (r * 3 + k) * 2 + x
                a(f'''v_lshlrev_b32 v{t0 + 2 * k}, 16, v{s}
                v_and_b32 v{t0 + 2 * k + 1}, {MASK}, v{s}''')
            for k in range(3):
                if OPT['stream']:
                    a(f'''v_fmaak_f32 v{t0 + 2 * k}, v{t0 + 2 * k}, v{fa}, 0x00800000
                    v_fmaak_f32 v{t0 + 2 * k + 1}, v{t0 + 2 * k + 1}, v{fb}, 0x00800000''')
                else:
                    a(f'''v_mul_f32 v{t0 + 2 * k}, v{t0 + 2 * k}, v{fa}
                    v_mul_f32 v{t0 + 2 * k + 1}, v{t0 + 2 * k + 1}, v{fb}''')
            if OPT['stream']:
                a(f'''v_add_f32 v{ra}, 0x00800000, v{ra}
                v_add_f32 v{rb}, 0x00800000, v{rb}''')
            encode([t0, t0 + 1, t0 + 2, t0 + 3, t0 + 4, t0 + 5, ra, rb], o, TM)
            a(f'buffer_store_dwordx4 {vr(o, 4)}, v8, s[44:47], 0 offen offset:{r * 256 + x * 64} {st}')
    a('''s_cmp_eq_u32 s28, 0
    s_cbranch_scc1 K1_GEMM_END''')
    for r in range(4):
        o = FB + r * 4
        f = [AC + 32 + t * 4 + r for t in range(8)]
        if OPT['stream']:
            for x in f:
                a(f'v_add_f32 v{x}, 0x00800000, v{x}')
        encode(f, o, TM)
        a(f'buffer_store_dwordx4 {vr(o, 4)}, v9, s[44:47], 0 offen offset:{r * 256} {st}')
    a('K1_GEMM_END:')
    stamp(a, 7, SV)
    stamp_out(a, SV, 's26', 0, 8)
    a('s_endpgm')

    SRC, DST = 8, 20
    PP = 32
    RC = 64
    BK = 104
    T = 116
    a('K1_BIN:')
    a(f'''
    s_sub_u32 s27, s2, {R_BIN}
    s_mul_i32 s48, s27, {CHUNK * 4}
    v_lshlrev_b32 v4, 4, v0
    v_add_u32 v5, 0x2000, v4
    v_lshlrev_b32 v6, 3, v0
    v_add_u32 v6, 0x4000, v6
    v_lshlrev_b32 v7, 4, v1
    v_mov_b32 v30, 0
    v_lshlrev_b32 v31, 2, v0
    v_cmp_gt_u32 vcc, 80, v0
    s_mov_b64 exec, vcc
    ds_write_b32 v31, v30 offset:{B_HIST}
    s_mov_b64 exec, -1
    s_lshl_b32 s49, s26, 13
    s_waitcnt lgkmcnt(0)
    ''')
    stamp(a, 0, SV, True)
    stamp(a, 1, SV)
    srd(a, 28, 's12', 's13', E * 4)
    srd(a, 32, 's14', 's15', E * 4)
    srd(a, 36, 's10', 's11', N * 6)
    for x in range(8):
        if x == 3:
            a('''s_cmp_eq_u32 s26, 7
            s_cbranch_scc1 K1_BIN_POSDONE''')
        if x == 4:
            a('s_add_u32 s49, s49, 4096')
        if x in (0, 4):
            a('s_mov_b32 m0, s49')
        a(f'buffer_load_dwordx4 v7, s[36:39], s49 offen offset:{(x & 3) * 1024} lds')
    a(f'''K1_BIN_POSDONE:
    buffer_load_dwordx4 {vr(SRC, 4)}, v4, s[28:31], s48 offen {ld}
    buffer_load_dwordx4 {vr(DST, 4)}, v4, s[32:35], s48 offen {ld}
    buffer_load_dwordx4 {vr(SRC + 4, 4)}, v5, s[28:31], s48 offen {ld}
    buffer_load_dwordx4 {vr(DST + 4, 4)}, v5, s[32:35], s48 offen {ld}
    buffer_load_dwordx2 {vr(SRC + 8, 2)}, v6, s[28:31], s48 offen {ld}
    buffer_load_dwordx2 {vr(DST + 8, 2)}, v6, s[32:35], s48 offen {ld}
    s_sub_i32 s50, {E * 4}, s48
    v_cmp_gt_i32 s[84:85], s50, v4
    v_cmp_gt_i32 s[86:87], s50, v5
    v_cmp_gt_i32 s[88:89], s50, v6
    s_movk_i32 s51, 6679
    s_mov_b64 s[90:91], 0
    v_mov_b32 v31, 1
    ''')
    srd_ws(a, 40, MISC_BASE, MISC_SIZE)
    for x in range(30):
        a(f'v_mov_b32 v{PP + x}, 0')
    a('''s_waitcnt vmcnt(0)
    s_barrier''')
    stamp(a, 2, SV)

    def posread(p):
        b = PP + (p % 5) * 6
        a(f'''v_mul_u32_u24 v{T}, 6, v{SRC + p}
        v_mul_u32_u24 v{T + 1}, 6, v{DST + p}''')
        for k in range(3):
            a(f'ds_read_u16_d16_hi v{b + k}, v{T} offset:{2 * k}')
            a(f'ds_read_u16_d16_hi v{b + 3 + k}, v{T + 1} offset:{2 * k}')

    posread(0); posread(1)
    for p in range(10):
        R = RC + 4 * p
        b = PP + (p % 5) * 6
        if p + 2 < 10:
            posread(p + 2)
        y = (6 if p + 1 < 10 else 0) + (6 if p + 2 < 10 else 0) + (1 if p >= 1 else 0)
        a(f's_waitcnt lgkmcnt({y})')
        x0, x1, x2, q0, q1, q2 = T + 2, T + 3, T + 4, T + 5, T + 6, T + 7
        a(f'''v_sub_f32 v{x0}, v{b}, v{b + 3}
        v_sub_f32 v{x1}, v{b + 1}, v{b + 4}
        v_sub_f32 v{x2}, v{b + 2}, v{b + 5}''')
        bf16_round_pair(a, x0, x1, T + 8)
        bf16_round1(a, x2)
        a(f'''v_mul_f32 v{q0}, v{x0}, v{x0}
        v_mul_f32 v{q1}, v{x1}, v{x1}
        v_mul_f32 v{q2}, v{x2}, v{x2}''')
        bf16_round_pair(a, q0, q1, T + 8)
        bf16_round1(a, q2)
        a(f'''v_add_f32 v{q0}, v{q0}, v{q1}
        v_add_f32 v{q0}, v{q0}, v{q2}
        v_mul_u32_u24 v{q2}, s51, v{DST + p}''')
        bf16_round1(a, q0)
        a(f'''v_add_f32 v{q0}, 0x322bcc77, v{q0}
        v_lshrrev_b32 v{q2}, 20, v{q2}''')
        bf16_round1(a, q0)
        a(f'''v_sqrt_f32 v{q0}, v{q0}
        v_lshlrev_b32 v{BK + p}, 2, v{q2}
        v_mul_u32_u24 v{q2}, {BN}, v{q2}''')
        bf16_round1(a, q0)
        vm = 84 + 2 * min(p // 4, 2)
        a(f'''v_rcp_f32 v{q1}, v{q0}
        v_cmp_gt_f32 vcc, 0x40a00000, v{q0}
        s_and_b64 {sr(60 + 2 * p, 2)}, vcc, {sr(vm, 2)}
        s_mov_b64 exec, {sr(60 + 2 * p, 2)}
        ds_add_rtn_u32 v{R + 3}, v{BK + p}, v31 offset:{B_HIST}
        v_sub_u32 v{q2}, v{DST + p}, v{q2}
        v_mul_f32 v{x0}, v{x0}, v{q1}
        v_mul_f32 v{x1}, v{x1}, v{q1}
        v_mul_f32 v{x2}, v{x2}, v{q1}
        v_lshrrev_b32 v{q0}, 16, v{q0}
        v_sub_u32 v{q0}, {GTOP}, v{q0}
        v_cmp_ne_u32 s[4:5], 0x7cf, v{q0}'''.replace('v_cmp_ne_u32 s[4:5], 0x7cf,', 'v_cmp_ne_u32 vcc, 0x7cf,'))
        a(f'''v_cvt_pk_bf16_f32 v{x0}, v{x0}, v{x0}
        v_cvt_pk_bf16_f32 v{R + 1}, v{x2}, v{x1}
        v_cndmask_b32 v{q0}, 1, v{q0}, vcc
        v_and_or_b32 v{R}, v{x0}, v{T + 9}, v{SRC + p}
        v_cmp_lt_u32 vcc, {NFAST - 1}, v{q0}
        s_or_b64 s[90:91], s[90:91], vcc
        v_lshlrev_b32 v{q0}, 5, v{q0}
        v_lshl_or_b32 v{R + 2}, v{q2}, 16, v{q0}
        s_mov_b64 exec, -1''')
    stamp(a, 3, SV)
    a(f'''
    v_mov_b32 v4, {B_HIST + 256}
    s_mov_b64 exec, s[90:91]
    ds_write_b32 v4, v31
    s_mov_b64 exec, -1
    s_waitcnt lgkmcnt(0)
    s_barrier
    v_lshlrev_b32 v7, 2, v1
    ds_read_b32 v5, v7 offset:{B_HIST}
    ds_read_b32 v30, v4
    s_waitcnt lgkmcnt(0)
    v_mov_b32 v6, v5
    ''')
    scan64(a, 6)
    a('v_sub_u32 v5, v6, v5')
    for p in range(10):
        a(f'ds_bpermute_b32 v{PP + p}, v{BK + p}, v5')
    a(f'''
    v_readlane_b32 s52, v6, 63
    s_cmp_lg_u32 s26, 0
    s_cbranch_scc1 K1_BIN_NOOFF
    s_lshl_b32 s50, s27, 2
    s_add_u32 s50, s50, {OFFS_OFF}
    v_lshlrev_b32 v4, 8, v1
    v_lshl_or_b32 v7, v30, 31, v5
    buffer_store_dword v7, v4, s[40:43], s50 offen {st}
    v_cmp_eq_u32 vcc, 63, v1
    s_mov_b64 exec, vcc
    buffer_store_dword v6, v4, s[40:43], s50 offen offset:256 {st}
    s_mov_b64 exec, -1
    K1_BIN_NOOFF:
    s_mul_i32 s51, s27, {CHUNK * 12}
    s_add_u32 s51, s51, {RECS_OFF}
    s_mul_i32 s52, s52, 12
    v_mov_b32 v7, {B_STG}
    ''')
    for p in range(10):
        R = RC + 4 * p
        a(f'''s_waitcnt lgkmcnt({min(15, 9 - p + 2 * p)})
        v_add_u32 v{PP + p}, v{PP + p}, v{R + 3}
        v_mad_u32_u24 v{PP + p}, v{PP + p}, 12, v7
        s_mov_b64 exec, {sr(60 + 2 * p, 2)}
        ds_write2_b32 v{PP + p}, v{R}, v{R + 1} offset0:0 offset1:1
        ds_write_b32 v{PP + p}, v{R + 2} offset:8
        s_mov_b64 exec, -1''')
    stamp(a, 4, SV)
    a(f'''
    v_lshlrev_b32 v4, 4, v0
    v_add_u32 v5, {B_STG}, v4
    s_waitcnt lgkmcnt(0)
    s_barrier
    ''')
    for it in range(8):
        a(f'ds_read_b128 {vr(RC + 4 * it, 4)}, v5 offset:{it * 8192}')
    for it in range(8):
        a(f'''v_cmp_gt_u32 vcc, s52, v4
        s_mov_b64 exec, vcc
        s_cbranch_execz K1_BIN_DONE
        s_waitcnt lgkmcnt({7 - it})
        buffer_store_dwordx4 {vr(RC + 4 * it, 4)}, v4, s[40:43], s51 offen {st}
        v_add_u32 v4, 0x2000, v4''')
    a('K1_BIN_DONE:')
    stamp(a, 7, SV)
    stamp_out(a, SV, 's26', 0, 8)
    a('s_endpgm')

    a(f'''K1_MISC:
    s_cmp_ge_u32 s2, {R_WRF}
    s_cbranch_scc1 K1_WRF
    s_sub_u32 s27, s2, {R_GT}
    s_lshl_b32 s27, s27, 9
    v_add_u32 v4, s27, v0
    v_sub_u32 v5, {GTOP}, v4
    v_mov_b32 v6, {DMIN}
    v_cmp_gt_u32 vcc, 2, v4
    v_cndmask_b32 v5, v5, v6, vcc
    s_waitcnt lgkmcnt(0)
    s_load_dwordx8 s[28:35], s[16:17], 0
    ''')
    srd_ws(a, 40, MISC_BASE + GT_OFF, 64000)
    a('''v_lshlrev_b32 v5, 16, v5
    v_rcp_f32 v6, v5
    v_mul_f32 v7, 0x40490fdb, v5''')
    bf16_round1(a, 7)
    a('v_mul_f32 v7, 0x3e4ccccd, v7')
    bf16_round1(a, 7)
    a('''v_mul_f32 v7, 0x3e22f983, v7
    v_cos_f32 v7, v7''')
    bf16_round1(a, 7)
    a('v_add_f32 v7, 1.0, v7')
    bf16_round1(a, 7)
    a('''v_mul_f32 v7, 0.5, v7
    v_cmp_ne_u32 vcc, 0, v4
    v_cndmask_b32 v7, 0, v7, vcc
    s_waitcnt lgkmcnt(0)''')
    for k2 in range(8):
        a(f'''s_lshl_b32 s36, s{28 + k2}, 16
        s_and_b32 s37, s{28 + k2}, 0xffff0000
        v_mul_f32 v8, s36, v5
        v_mul_f32 v9, s37, v5''')
        bf16_round_pair(a, 8, 9, 10)
        a('''v_mul_f32 v8, 0x3e22f983, v8
        v_mul_f32 v9, 0x3e22f983, v9
        v_rndne_f32 v10, v8
        v_rndne_f32 v11, v9
        v_sub_f32 v8, v8, v10
        v_sub_f32 v9, v9, v11
        v_sin_f32 v8, v8
        v_sin_f32 v9, v9''')
        bf16_round_pair(a, 8, 9, 10)
        a('''v_mul_f32 v8, v8, v6
        v_mul_f32 v9, v9, v6''')
        bf16_round_pair(a, 8, 9, 10)
        a(f'''v_mul_f32 v8, v8, v7
        v_mul_f32 v9, v9, v7
        v_cvt_pk_bf16_f32 v{16 + k2}, v8, v9''')
    a(f'''v_lshlrev_b32 v4, 5, v4
    buffer_store_dwordx4 v[16:19], v4, s[40:43], 0 offen {st}
    buffer_store_dwordx4 v[20:23], v4, s[40:43], 0 offen offset:16 {st}
    s_endpgm
    K1_WRF:
    s_waitcnt lgkmcnt(0)
    ''')
    srd(a, 28, 's22', 's23', 16 * 768)
    srd_ws(a, 40, MISC_BASE + WRF_OFF, 12288)
    a(f'''
    v_mul_u32_u24 v4, 3072, v2
    v_lshlrev_b32 v8, 4, v0
    s_cmp_eq_u32 s2, {R_WRF}
    s_cbranch_scc0 K1_WRF_S
    s_and_b32 s3, s26, 1
    s_add_u32 s3, s3, 1
    s_lshl_b32 s3, s3, 8
    s_lshr_b32 s4, s26, 1
    s_lshl_b32 s4, s4, 6
    s_add_u32 s3, s3, s4
    v_and_b32 v5, 3, v3
    v_lshlrev_b32 v5, 4, v5
    v_and_b32 v6, 12, v3
    v_add3_u32 v4, v4, v5, v6
    s_branch K1_WRF_GO
    K1_WRF_S:
    s_and_b32 s3, s26, 3
    s_lshl_b32 s3, s3, 2
    v_lshl_add_u32 v4, v3, 4, v4
    v_add_u32 v8, 0x2000, v8
    K1_WRF_GO:
    buffer_load_dword v12, v4, s[28:31], s3 offen
    buffer_load_dword v13, v4, s[28:31], s3 offen offset:768
    buffer_load_dword v14, v4, s[28:31], s3 offen offset:1536
    buffer_load_dword v15, v4, s[28:31], s3 offen offset:2304
    s_waitcnt vmcnt(0)
    v_perm_b32 v16, v13, v12, s54
    v_perm_b32 v17, v15, v14, s54
    v_perm_b32 v18, v13, v12, s55
    v_perm_b32 v19, v15, v14, s55
    buffer_store_dwordx4 v[16:19], v8, s[40:43], 0 offen {st}
    K1_END:
    s_endpgm''')
    items = a.items
    for i, (k, x) in enumerate(items):
        if k == 'l' and x == 'K1_BIN_POSDONE':
            from asmlib import Ins
            items.insert(i + 1, ('i', Ins(f'v_mov_b32 v{T + 9}, {MASK}')))
            break
    return a


def gen_k2():
    a = Asm()
    stream = OPT['stream']
    SV = 127
    D = 8
    W = 24
    BWV = 56
    BWS = 64
    A = 80
    GA, QN = 82, 83
    SR = 84
    RH = 88
    ACC = 96
    U = 104
    FV, FS = 116, 118
    cR, cGA, cLM, cQ8 = 120, 121, 122, 123
    vMask, aR1, aR2 = 124, 125, 126
    vO1, vO2, vOS, vX = 4, 5, 6, 7
    REC = 8
    HA = 40
    SQ = 48

    a(f'''
    s_cmp_ge_u32 s2, 256
    s_cbranch_scc1 K2_END
    s_load_dwordx2 s[24:25], s[0:1], 80
    s_load_dwordx2 s[8:9], s[0:1], 0
    s_load_dwordx2 s[14:15], s[0:1], 64
    v_and_b32 v1, 63, v0
    v_lshrrev_b32 v4, 6, v0
    v_lshrrev_b32 v2, 4, v1
    v_readfirstlane_b32 s30, v4
    v_and_b32 v3, 15, v1
    s_and_b32 s26, s2, 3
    s_lshr_b32 s27, s2, 3
    s_lshl_b32 s27, s27, 1
    s_bfe_u32 s3, s2, 0x10002
    s_add_u32 s27, s27, s3
    s_lshl_b32 s6, s27, 8
    s_lshl_b32 s7, s30, 4
    s_add_u32 s6, s6, s7
    s_add_u32 s6, s6, {MISC_BASE + OFFS_OFF}
    v_lshlrev_b32 v5, 4, v0
    v_mov_b32 v104, 0xffff
    v_mov_b32 v105, 0
    v_mov_b32 v106, 0xffff
    v_mov_b32 v107, 0
    v_add_u32 v103, {L_REC}, v5
    s_waitcnt lgkmcnt(0)
    s_load_dwordx4 s[44:47], s[24:25], s6
    s_load_dwordx4 s[48:51], s[24:25], s6 offset:256
    ''')
    stamp(a, 0, SV, True)
    stamp(a, 1, SV)
    srd_ws(a, 40, MISC_BASE, MISC_SIZE)
    a(f'''
    ds_write_b128 v103, v[104:107]
    ds_write_b128 v103, v[104:107] offset:16384
    v_cmp_gt_u32 vcc, {(L_TOTAL - L_REC) // 16 - 2048}, v0
    s_mov_b64 exec, vcc
    ds_write_b128 v103, v[104:107] offset:32768
    s_mov_b64 exec, -1
    v_mov_b32 v108, 0
    v_mov_b32 v109, 0
    v_mov_b32 v110, 0
    v_mov_b32 v111, 0
    v_cmp_gt_u32 vcc, {(L_WRF - L_GA) // 16}, v0
    s_mov_b64 exec, vcc
    ds_write_b128 v5, v[108:111] offset:{L_GA}
    v_cmp_gt_u32 vcc, {(L_QN - L_HIST) // 16}, v0
    s_mov_b64 exec, vcc
    ds_write_b128 v5, v[108:111] offset:{L_HIST}
    v_mov_b32 v112, -1
    v_mov_b32 v113, -1
    v_mov_b32 v114, -1
    v_mov_b32 v115, -1
    v_cmp_gt_u32 vcc, {(L_GA - L_QN) // 16}, v0
    s_mov_b64 exec, vcc
    ds_write_b128 v5, v[112:115] offset:{L_QN}
    s_mov_b64 exec, -1
    s_mul_i32 s28, s27, {BN}
    s_sub_u32 s29, {N}, s28
    s_min_u32 s29, s29, {BN}
    s_mul_i32 s12, s26, {SN}
    s_min_u32 s12, s12, s29
    s_add_u32 s13, s12, {SN}
    s_min_u32 s13, s13, s29
    s_mul_i32 s4, s26, {TAB}
    s_add_u32 s32, s24, s4
    s_addc_u32 s33, s25, 0
    s_mov_b32 s34, {TAB}
    s_mov_b32 s35, 0x00020000
    s_add_u32 s36, s24, {TABS_BASE}
    s_addc_u32 s37, s25, 0
    v_mul_u32_u24 v100, 12, v1
    v_lshlrev_b32 v101, 4, v1
    v_add_u32 v102, 64, v1
    s_mul_i32 s7, s30, {4 * CHUNK * 12}
    s_add_u32 s7, s7, {RECS_OFF}
    s_waitcnt lgkmcnt(0)
    ''')
    stamp(a, 2, SV)
    a('''s_or_b32 s3, s44, s45
    s_or_b32 s4, s46, s47
    s_or_b32 s3, s3, s4
    s_lshr_b32 s31, s3, 31''')
    for x in range(4):
        a(f'''s_and_b32 s{44 + x}, s{44 + x}, 0xffff
        s_and_b32 s{48 + x}, s{48 + x}, 0xffff
        s_sub_u32 s{48 + x}, s{48 + x}, s{44 + x}
        s_mul_i32 s{44 + x}, s{44 + x}, 12
        s_add_u32 s{44 + x}, s{44 + x}, s7
        s_add_u32 s7, s7, {CHUNK * 12}
        v_cmp_gt_u32 {sr(60 + 2 * x, 2)}, s{48 + x}, v1
        s_mov_b64 exec, {sr(60 + 2 * x, 2)}
        buffer_load_dwordx3 {vr(REC + 4 * x, 3)}, v100, s[40:43], s{44 + x} offen
        s_mov_b64 exec, -1''')
    a('''s_max_u32 s3, s48, s49
    s_max_u32 s4, s50, s51
    s_max_u32 s16, s3, s4
    s_cmp_gt_u32 s16, 128
    s_cselect_b32 s31, 1, s31
    s_cmp_le_u32 s16, 64
    s_cbranch_scc1 K2_RL_DONE''')
    for x in range(4):
        a(f'''v_cmp_gt_u32 {sr(68 + 2 * x, 2)}, s{48 + x}, v102
        s_mov_b64 exec, {sr(68 + 2 * x, 2)}
        buffer_load_dwordx3 {vr(REC + 16 + 4 * x, 3)}, v100, s[40:43], s{44 + x} offen offset:768
        s_mov_b64 exec, -1''')
    a(f'''
    K2_RL_DONE:
    s_lshl_b32 s3, s30, 10
    s_mov_b32 m0, s3
    s_add_u32 s4, s3, 0x4000
    buffer_load_dwordx4 v101, s[40:43], s3 offen lds
    s_mov_b32 m0, s4
    s_cmp_ge_u32 s30, 12
    buffer_load_dwordx4 v101, s[40:43], s4 offen lds
    s_cbranch_scc1 K2_DMA_DONE
    s_add_u32 s4, s3, 0x8000
    s_mov_b32 s5, s4
    s_cmp_lt_u32 s30, 6
    s_cbranch_scc1 K2_DMA_3
    s_add_u32 s5, s3, {L_WRF - 6144}
    s_add_u32 s4, s3, {WRF_OFF + 8192 - 8192}
    s_cmp_ge_u32 s30, 8
    s_cbranch_scc1 K2_DMA_3
    s_lshl_b32 s4, s26, 11
    s_add_u32 s4, s4, s3
    s_add_u32 s4, s4, {WRF_OFF - 6144}
    K2_DMA_3:
    s_mov_b32 m0, s5
    s_nop 0
    buffer_load_dwordx4 v101, s[40:43], s4 offen lds
    K2_DMA_DONE:
    v_mov_b32 v104, 1
    v_mov_b32 v105, {L_FLAG}
    s_waitcnt lgkmcnt(0)
    s_barrier
    s_cmp_eq_u32 s31, 0
    s_cbranch_scc1 K2_NOFLAG
    ds_write_b32 v105, v104
    K2_NOFLAG:
    s_waitcnt vmcnt(2)
    ''')
    stamp(a, 3, SV)

    def for_records(fn, tag):
        for x in range(4):
            a(f's_mov_b64 exec, {sr(60 + 2 * x, 2)}')
            fn(x)
        a(f'''s_cmp_le_u32 s16, 64
        s_cbranch_scc1 {tag}''')
        for x in range(4, 8):
            a(f's_mov_b64 exec, {sr(60 + 2 * x, 2)}')
            fn(x)
        a(f'''{tag}:
        s_mov_b64 exec, -1''')

    def f_hist(x):
        R = REC + 4 * x
        a(f'''v_lshrrev_b32 v{HA + x}, 16, v{R + 2}
        v_lshlrev_b32 v{HA + x}, 2, v{HA + x}
        ds_add_rtn_u32 v{R + 3}, v{HA + x}, v104 offset:{L_HIST}''')
    for_records(f_hist, 'K2_H_DONE')
    a(f'''
    v_lshlrev_b32 v{cQ8}, 3, v2
    v_add_u32 v{cR}, {L_REC}, v{cQ8}
    v_and_b32 v106, 3, v3
    v_lshrrev_b32 v107, 2, v3
    v_lshlrev_b32 v{cGA}, 3, v106
    v_lshl_add_u32 v{cGA}, v107, 1, v{cGA}
    v_lshlrev_b32 v{cLM}, 4, v3
    v_mov_b32 v{vMask}, {MASK}
    v_lshlrev_b32 v108, 4, v106
    v_lshl_add_u32 v108, v107, 2, v108
    v_lshrrev_b32 v109, 1, v2
    v_lshl_add_u32 v108, v109, 1, v108
    v_add_u32 v{vO2}, {L_OB + 192}, v108
    v_and_b32 v109, 1, v2
    v_lshl_add_u32 v108, v109, 6, v108
    v_add_u32 v{vO1}, {L_OB + 64}, v108
    v_lshlrev_b32 v108, 8, v107
    v_lshl_add_u32 v108, v106, 4, v108
    v_lshl_add_u32 v108, v2, 2, v108
    v_add_u32 v{vOS}, {L_OB}, v108
    s_lshl_b32 s3, s29, 2
    s_add_u32 s3, s3, {L_START}
    v_writelane_b32 v110, s3, 0
    s_lshl_b32 s3, s12, 2
    s_add_u32 s3, s3, {L_START}
    v_writelane_b32 v110, s3, 1
    s_lshl_b32 s3, s13, 2
    s_add_u32 s3, s3, {L_START}
    v_writelane_b32 v110, s3, 2
    s_mov_b32 s3, {L_FLAG}
    v_writelane_b32 v110, s3, 3
    s_waitcnt vmcnt(0) lgkmcnt(0)
    s_barrier
    s_cmp_lg_u32 s30, 0
    s_cbranch_scc1 K2_NOSCAN
    ds_read_b32 v72, v100 offset:{L_HIST}
    ds_read_b32 v73, v100 offset:{L_HIST + 4}
    ds_read_b32 v74, v100 offset:{L_HIST + 8}
    v_mul_u32_u24 v76, 3, v1
    v_add_u32 v77, 1, v76
    v_add_u32 v78, 2, v76
    v_cmp_gt_u32 s[84:85], s29, v76
    v_cmp_gt_u32 s[86:87], s29, v77
    v_cmp_gt_u32 s[88:89], s29, v78
    s_waitcnt lgkmcnt(0)
    ''')
    for x in range(3):
        a(f'''v_add_u32 v{72 + x}, 3, v{72 + x}
        v_lshrrev_b32 v{72 + x}, 2, v{72 + x}
        v_max_u32 v{72 + x}, 1, v{72 + x}
        v_cndmask_b32 v{72 + x}, 0, v{72 + x}, {sr(84 + 2 * x, 2)}''')
    a('''v_add3_u32 v79, v72, v73, v74
    v_mov_b32 v83, v79''')
    scan64(a, 83)
    a(f'''
    v_sub_u32 v80, v83, v79
    v_add_u32 v81, v80, v72
    v_add_u32 v82, v81, v73
    v_readlane_b32 s3, v83, 63
    v_lshlrev_b32 v72, 2, v80
    v_lshlrev_b32 v73, 2, v81
    v_lshlrev_b32 v74, 2, v82
    v_add_u32 v72, {L_REC // 8}, v72
    v_add_u32 v73, {L_REC // 8}, v73
    v_add_u32 v74, {L_REC // 8}, v74
    ds_write_b32 v100, v72 offset:{L_START}
    ds_write_b32 v100, v73 offset:{L_START + 4}
    ds_write_b32 v100, v74 offset:{L_START + 8}
    s_cmp_gt_u32 s3, {QCAP}
    s_cbranch_scc1 K2_NOSCAN
    ''')
    for x in range(3):
        a(f'''s_mov_b64 exec, {sr(84 + 2 * x, 2)}
        ds_write_b8 v{81 + x}, v{76 + x} offset:{L_QN + 3}''')
    a(f'''s_mov_b64 exec, -1
    K2_NOSCAN:
    ds_read_b128 {vr(BWV, 4)}, v101 offset:{L_WRF}
    ds_read_b128 {vr(BWV + 4, 4)}, v101 offset:{L_WRF + 1024}
    ds_read_b128 {vr(BWS, 4)}, v101 offset:{L_WRF + 2048}
    ds_read_b128 {vr(BWS + 4, 4)}, v101 offset:{L_WRF + 3072}
    ds_read_b128 {vr(BWS + 8, 4)}, v101 offset:{L_WRF + 4096}
    ds_read_b128 {vr(BWS + 12, 4)}, v101 offset:{L_WRF + 5120}
    s_waitcnt lgkmcnt(0)
    s_barrier
    ''')
    stamp(a, 4, SV)
    a('''s_mov_b64 exec, 15
    ds_read_b32 v111, v110''')

    def f_start(x):
        a(f'ds_read_b32 v{SQ + x}, v{HA + x} offset:{L_START}')
    for_records(f_start, 'K2_S1_DONE')
    a(f'''s_waitcnt lgkmcnt(0)
    v_readlane_b32 s17, v111, 0
    v_readlane_b32 s18, v111, 1
    v_readlane_b32 s19, v111, 2
    v_readlane_b32 s3, v111, 3
    s_sub_u32 s17, s17, {L_REC // 8}
    s_cmp_gt_u32 s17, {QCAP * 4}
    s_cbranch_scc1 K2_FALLBACK
    s_cmp_lg_u32 s3, 0
    s_cbranch_scc1 K2_FALLBACK
    ''')

    def f_scatter(x):
        R = REC + 4 * x
        a(f'''v_add_u32 v{SQ + x}, v{SQ + x}, v{R + 3}
        v_lshlrev_b32 v{HA + x}, 3, v{SQ + x}
        v_add_u32 v{SQ + x}, v{SQ + x}, v{SQ + x}
        ds_write_b64 v{HA + x}, {vr(R, 2)}
        ds_write_b16 v{SQ + x}, v{R + 2} offset:{L_GA - L_REC // 4}''')
    for_records(f_scatter, 'K2_S2_DONE')
    a(f'''
    s_add_u32 s17, s17, 15
    s_lshr_b32 s17, s17, 4
    s_mul_i32 s20, s30, s17
    s_add_u32 s21, s20, s17
    s_lshr_b32 s20, s20, 4
    s_lshr_b32 s21, s21, 4
    s_sub_u32 s21, s21, s20
    s_sub_u32 s18, s18, {L_REC // 8}
    s_sub_u32 s19, s19, {L_REC // 8 - 15}
    s_lshr_b32 s18, s18, 4
    s_lshr_b32 s19, s19, 4
    s_sub_u32 s19, s19, s18
    s_cmp_eq_u32 s12, s13
    s_cselect_b32 s19, 0, s19
    s_mul_i32 s22, s30, s19
    s_add_u32 s23, s22, s19
    s_lshr_b32 s22, s22, 4
    s_lshr_b32 s23, s23, 4
    s_sub_u32 s23, s23, s22
    s_add_u32 s22, s22, s18
    s_sub_u32 s13, s13, s12
    s_lshl_b32 s3, s20, 2
    s_lshl_b32 s4, s22, 2
    v_mov_b32 v108, s3
    v_writelane_b32 v108, s4, 1
    s_mov_b32 s44, s20
    s_mov_b32 s45, s21
    s_cmp_eq_u32 s21, 0
    s_cselect_b32 s44, s22, s44
    s_cselect_b32 s32, s36, s32
    s_cselect_b32 s33, s37, s33
    s_mov_b32 s52, 3
    s_mov_b32 s53, 3
    s_mov_b32 s56, -1
    s_mov_b32 s57, -1
    s_mul_i32 s58, s21, 11
    s_lshr_b32 s59, s58, 5
    s_lshr_b32 s58, s58, 4
    s_waitcnt lgkmcnt(0)
    s_barrier
    s_add_u32 s3, s21, s23
    s_cmp_eq_u32 s3, 0
    s_cbranch_scc1 K2_STREAM_DONE
    ''')
    stamp(a, 5, SV)
    if OPT['prio']:
        a('s_setprio 3')

    def adv():
        a('''s_add_u32 s44, s44, 1
        s_sub_u32 s45, s45, 1
        s_cmp_eq_u32 s45, 0
        s_cselect_b32 s44, s22, s44''')

    def gather(r):
        a(f'''v_lshl_add_u32 v{U + 11}, v{SR + r}, 8, v{cLM}
        buffer_load_dwordx4 {vr(D + 4 * r, 4)}, v{U + 11}, s[32:35], 0 offen''')

    a(f'''
    s_lshl_b32 s3, s44, 7
    v_add_u32 v{aR1}, s3, v{cR}
    s_lshl_b32 s3, s44, 5
    v_add_u32 v{U}, s3, v{cGA}
    s_lshl_b32 s3, s44, 2
    v_mov_b32 v{U + 1}, s3
    ''')
    for r in range(4):
        a(f'ds_read_u16 v{SR + r}, v{aR1} offset:{32 * r}')
    a(f'''ds_read_u16 v{GA}, v{U} offset:{L_GA}
    ds_read_b32 v{U + 2}, v{U + 1} offset:{L_QN + 4}
    ds_read_u8 v{U + 3}, v108 offset:{L_QN + 3}''')
    adv()
    a(f'''
    s_lshl_b32 s3, s44, 7
    v_add_u32 v{aR2}, s3, v{cR}
    s_lshl_b32 s3, s44, 5
    v_add_u32 v{U}, s3, v{cGA}
    s_lshl_b32 s3, s44, 2
    v_mov_b32 v{U + 1}, s3
    s_waitcnt lgkmcnt(0)
    ''')
    for r in range(4):
        gather(r)
    a(f'''v_add_u32 v{GA}, v{GA}, v{cQ8}
    ds_read_b64 {vr(A, 2)}, v{GA}
    ds_read_u16 v{GA}, v{U} offset:{L_GA}
    ds_read_b32 v{QN}, v{U + 1} offset:{L_QN + 4}''')
    for r in range(4):
        a(f'''ds_read_b64 {vr(RH + 2 * r, 2)}, v{aR1} offset:{32 * r}
        ds_read_u16 v{SR + r}, v{aR2} offset:{32 * r}''')
    a(f'''v_readfirstlane_b32 s47, v{U + 2}
    v_readlane_b32 s3, v{U + 3}, 0
    v_readlane_b32 s4, v{U + 3}, 1
    s_cmp_eq_u32 s3, 0xff
    s_cselect_b32 s54, 1, 0
    s_cmp_eq_u32 s20, 0
    s_cselect_b32 s54, 0, s54
    s_cmp_eq_u32 s4, 0xff
    s_cselect_b32 s55, 1, 0
    s_cmp_eq_u32 s22, 0
    s_cselect_b32 s55, 0, s55
    ''')
    for x in range(8):
        a(f'v_mov_b32 v{ACC + x}, 0')
    a('''s_cmp_eq_u32 s21, 0
    s_cbranch_scc1 K2_SLOOP''')

    def top(nm, bw, lg):
        a(f's_waitcnt lgkmcnt({lg})')
        for x in range(nm):
            a(f'v_mfma_f32_16x16x16_bf16 {vr(W + 4 * x, 4)}, {vr(A, 2)}, {vr(bw + 2 * x, 2)}, 0')
        a('s_mov_b32 s46, s47')
        adv()
        a(f'''v_add_u32 v{GA}, v{GA}, v{cQ8}
        v_readfirstlane_b32 s47, v{QN}
        ds_read_b64 {vr(A, 2)}, v{GA}
        v_mov_b32 v{aR1}, v{aR2}
        s_lshl_b32 s3, s44, 7
        v_add_u32 v{aR2}, s3, v{cR}
        s_lshl_b32 s3, s44, 5
        v_add_u32 v{U}, s3, v{cGA}
        s_lshl_b32 s3, s44, 2
        v_mov_b32 v{U + 1}, s3
        ds_read_u16 v{GA}, v{U} offset:{L_GA}
        ds_read_b32 v{QN}, v{U + 1} offset:{L_QN + 4}''')

    def unpack(r):
        d = D + 4 * r
        if stream:
            a(f'''v_lshlrev_b64 {vr(U, 2)}, 16, {vr(d, 2)}
            v_lshlrev_b64 {vr(U + 2, 2)}, 16, {vr(d + 2, 2)}''')
            return [U, d, U + 1, d + 1, U + 2, d + 2, U + 3, d + 3]
        f = []
        for x in range(4):
            a(f'''v_lshlrev_b32 v{U + 2 * x + 1}, 16, v{d + x}
            v_and_b32 v{U + 2 * x}, v{vMask}, v{d + x}''')
            f += [U + 2 * x + 1, U + 2 * x]
        return f

    def fmac(acc, x, y):
        if (acc & 1) == (x & 1) == (y & 1):
            OPT['_bankconf'] = OPT.get('_bankconf', 0) + 1
        a(f'v_fmac_f32 v{acc}, v{x}, v{y}')

    if stream:
        accmap = [ACC + 1, ACC + 3, ACC + 0, ACC + 2, ACC + 5, ACC + 7, ACC + 4, ACC + 6]
    else:
        accmap = [ACC + x for x in range(8)]

    def red_v():
        for k in range(3):
            a(f'v_permlane32_swap_b32 v{accmap[2 * k]}, v{accmap[2 * k + 1]}')
        for k in range(3):
            a(f'v_add_f32 v{accmap[2 * k]}, v{accmap[2 * k]}, v{accmap[2 * k + 1]}')
        a(f'''v_mov_b32 v{accmap[5]}, v{accmap[4]}
        v_permlane16_swap_b32 v{accmap[0]}, v{accmap[2]}
        v_permlane16_swap_b32 v{accmap[4]}, v{accmap[5]}
        v_add_f32 v{accmap[0]}, v{accmap[0]}, v{accmap[2]}
        v_add_f32 v{accmap[4]}, v{accmap[4]}, v{accmap[5]}''')
        return accmap[0], accmap[4]

    def red_s():
        for pa in range(2):
            a(f'v_permlane32_swap_b32 v{accmap[pa]}, v{accmap[4 + pa]}')
            a(f'v_permlane32_swap_b32 v{accmap[2 + pa]}, v{accmap[6 + pa]}')
        for pa in range(2):
            a(f'v_add_f32 v{accmap[pa]}, v{accmap[pa]}, v{accmap[4 + pa]}')
            a(f'v_add_f32 v{accmap[2 + pa]}, v{accmap[2 + pa]}, v{accmap[6 + pa]}')
        for pa in range(2):
            a(f'v_permlane16_swap_b32 v{accmap[pa]}, v{accmap[2 + pa]}')
        for pa in range(2):
            a(f'v_add_f32 v{accmap[pa]}, v{accmap[pa]}, v{accmap[2 + pa]}')
        return accmap[0], accmap[1]

    def write_v(x, y, node):
        a(f'''s_lshl_b32 s3, {node}, 8
        v_cvt_pk_bf16_f32 v{x}, v{x}, v{y}
        v_add_u32 v{vX}, s3, v{vO1}
        v_add_u32 v{y}, s3, v{vO2}
        ds_write_b16 v{vX}, v{x}
        ds_write_b16_d16_hi v{y}, v{x}''')

    def write_s(x, y, node, skip):
        a(f'''s_sub_u32 s3, {node}, s12
        s_cmp_ge_u32 s3, s13
        s_cbranch_scc1 {skip}
        s_lshl_b32 s3, s3, 10
        v_cvt_pk_bf16_f32 v{x}, v{x}, v{y}
        v_add_u32 v{vX}, s3, v{vOS}
        ds_write_b32 v{vX}, v{x}''')

    def flush(kind, r):
        L = f'K2_{kind}F{r}'
        cont, stat, fnode, freg = ('s54', 's52', 's56', FV) if kind == 'V' else ('s55', 's53', 's57', FS)
        a(f'''s_bfe_u32 s5, s46, {(8 << 16) | (8 * r):#x}
        s_cmp_eq_u32 s5, 0xff
        s_cbranch_scc1 {L}''')
        x, y = red_v() if kind == 'V' else red_s()
        a(f'''s_cmp_eq_u32 {cont}, 0
        s_cbranch_scc1 {L}_n
        v_mov_b32 v{freg}, v{x}
        v_mov_b32 v{freg + 1}, v{y}
        s_mov_b32 {fnode}, s5
        s_mov_b32 {cont}, 0
        s_branch {L}_z
        {L}_n:''')
        if kind == 'V':
            write_v(x, y, 's5')
        else:
            write_s(x, y, 's5', f'{L}_z')
        a(f'{L}_z:')
        for xx in range(6 if kind == 'V' else 8):
            a(f'v_mov_b32 v{accmap[xx]}, 0')
        a(f'{L}:')

    def tail(kind):
        cont, stat = ('s54', 's52') if kind == 'V' else ('s55', 's53')
        L = f'K2_{kind}T'
        a(f'''s_mov_b32 {stat}, 0
        s_lshr_b32 s5, s46, 24
        s_cmp_lg_u32 s5, 0xff
        s_cbranch_scc1 {L}''')
        x, y = red_v() if kind == 'V' else red_s()
        a(f'''s_add_u32 {stat}, {cont}, 1
        s_lshl_b32 s3, s30, 9
        v_lshl_add_u32 v{vX}, v1, 2, s3
        ds_write_b32 v{vX}, v{x} offset:{L_CARRY + (0 if kind == 'V' else 8192) - (0 if kind == 'V' else 0)}
        ds_write_b32 v{vX}, v{y} offset:{L_CARRY + 256 + (0 if kind == 'V' else 8192)}'''
          if kind == 'V' else
          f'''s_add_u32 {stat}, {cont}, 1
        s_lshl_b32 s3, s30, 9
        s_add_u32 s3, s3, 8192
        v_lshl_add_u32 v{vX}, v1, 2, s3
        ds_write_b32 v{vX}, v{x} offset:{L_CARRY}
        ds_write_b32 v{vX}, v{y} offset:{L_CARRY + 256}''')
        for xx in range(8):
            a(f'v_mov_b32 v{ACC + xx}, 0')
        a(f'{L}:')

    a('K2_VLOOP:')
    top(4, BWV, 8)
    a('''s_sub_u32 s21, s21, 1
    s_cmp_eq_u32 s21, 0
    s_cselect_b32 s32, s36, s32
    s_cselect_b32 s33, s37, s33
    s_add_u32 s3, s21, s23
    s_cmp_eq_u32 s3, 0
    s_cselect_b32 s34, 0, s34''')
    if OPT['prio']:
        a('''s_cmp_lg_u32 s21, s58
        s_cbranch_scc1 K2_P1
        s_setprio 2
        K2_P1:
        s_cmp_lg_u32 s21, s59
        s_cbranch_scc1 K2_P2
        s_setprio 1
        K2_P2:''')
    for r in range(4):
        a('s_waitcnt vmcnt(3) lgkmcnt(9)')
        f = unpack(r)
        w = lambda x: W + 4 * x + r
        h = RH + 2 * r
        ta, tb = (U + 5, U + 4) if stream else (U + 9, U + 8)
        r2 = U + 10
        a(f'''v_mul_f32 v{ta}, v{f[6]}, v{w(2)}
        v_mul_f32 v{tb}, v{f[7]}, v{w(3)}
        v_lshlrev_b32 v{r2}, 16, v{h + 1}
        v_and_b32 v{h}, v{vMask}, v{h}
        v_and_b32 v{h + 1}, v{vMask}, v{h + 1}''')
        for k in range(3):
            for pa in range(2):
                fmac(accmap[2 * k + pa], f[2 * k + pa], w(pa))
        gather(r)
        rk = [h, h + 1, r2]
        for k in range(3):
            for pa in range(2):
                fmac(accmap[2 * k + pa], [ta, tb][pa], rk[k])
        a(f'''ds_read_b64 {vr(h, 2)}, v{aR1} offset:{32 * r}
        ds_read_u16 v{SR + r}, v{aR2} offset:{32 * r}''')
        flush('V', r)
    a('''s_cmp_lg_u32 s21, 0
    s_cbranch_scc1 K2_VLOOP''')
    tail('V')
    a('''s_cmp_eq_u32 s23, 0
    s_cbranch_scc1 K2_STREAM_DONE''')
    if OPT['prio']:
        a('s_setprio 0')
    a('K2_SLOOP:')
    top(8, BWS, 4)
    a('''s_sub_u32 s23, s23, 1
    s_cmp_eq_u32 s23, 0
    s_cselect_b32 s34, 0, s34''')
    for r in range(4):
        a('s_waitcnt vmcnt(3) lgkmcnt(6)')
        f = unpack(r)
        if not stream:
            gather(r)
        for t in range(8):
            fmac(accmap[t], f[t], W + 4 * t + r)
        if stream:
            gather(r)
        a(f'ds_read_u16 v{SR + r}, v{aR2} offset:{32 * r}')
        flush('S', r)
    a('''s_cmp_lg_u32 s23, 0
    s_cbranch_scc1 K2_SLOOP''')
    tail('S')

    SVR = 8
    OBR = 24
    a(f'''
    K2_STREAM_DONE:
    s_setprio 0
    s_lshl_b32 s3, s30, 2
    v_mov_b32 v40, s3
    v_mov_b32 v41, s52
    v_mov_b32 v42, s53
    ds_write_b32 v40, v41 offset:{L_ST}
    ds_write_b32 v40, v42 offset:{L_ST + 64}
    s_waitcnt vmcnt(0)''')
    stamp(a, 6, SV)
    srd(a, 44, 's8', 's9', N * 1024)
    srd(a, 48, 's14', 's15', N * 1024)
    a(f'''
    v_lshrrev_b32 v43, 4, v0
    v_bfe_u32 v44, v0, 2, 2
    v_and_b32 v45, 3, v0
    v_lshlrev_b32 v45, 4, v45
    s_lshl_b32 s3, s28, 10
    s_lshl_b32 s4, s26, 6
    s_add_u32 s4, s4, s3
    v_lshl_add_u32 v46, v43, 10, v45
    v_lshl_add_u32 v46, v44, 8, v46
    v_add_u32 v46, s4, v46
    s_lshl_b32 s4, s12, 10
    s_add_u32 s4, s4, s3
    v_lshrrev_b32 v47, 2, v43
    v_and_b32 v48, 3, v43
    v_lshl_add_u32 v49, v47, 10, v45
    v_lshl_add_u32 v49, v48, 6, v49
    v_add_u32 v49, s4, v49
    v_cmp_eq_u32 s[66:67], 0, v44
    v_mov_b32 v50, 0x10000
    v_mov_b32 v51, 0x4000
    v_mov_b32 v52, s29
    s_lshl_b32 s3, s13, 2
    v_mov_b32 v53, s3
    v_cndmask_b32 v46, v46, v49, s[66:67]
    v_cndmask_b32 v50, v50, v51, s[66:67]
    v_cndmask_b32 v52, v52, v53, s[66:67]
    v_add_u32 v47, v46, v50
    v_add_u32 v48, v47, v50
    v_cmp_lt_u32 s[60:61], v43, v52
    v_add_u32 v43, 64, v43
    v_cmp_lt_u32 s[62:63], v43, v52
    v_add_u32 v43, 64, v43
    v_cmp_lt_u32 s[64:65], v43, v52
    ''')
    for it in range(3):
        a(f'''s_mov_b64 exec, {sr(60 + 2 * it, 2)}
        buffer_load_dwordx4 {vr(SVR + 4 * it, 4)}, v{46 + it}, s[44:47], 0 offen {OPT['k2ld']}''')
    a('''s_mov_b64 exec, -1
    s_waitcnt lgkmcnt(0)
    s_barrier''')
    for kind in 'VS':
        fnode, freg, so, co = ('s56', FV, 0, 0) if kind == 'V' else ('s57', FS, 64, 8192)
        L = f'K2_FIN{kind}'
        a(f'''
        s_cmp_lt_i32 {fnode}, 0
        s_cbranch_scc1 {L}_done
        s_mov_b32 s6, s30
        {L}_loop:
        s_cmp_eq_u32 s6, 0
        s_cbranch_scc1 {L}_wr
        s_sub_u32 s6, s6, 1
        s_lshl_b32 s3, s6, 2
        v_mov_b32 v40, s3
        s_lshl_b32 s3, s6, 9
        s_add_u32 s3, s3, {co}
        v_lshl_add_u32 v41, v1, 2, s3
        ds_read_b32 v40, v40 offset:{L_ST + so}
        ds_read_b32 v42, v41 offset:{L_CARRY}
        ds_read_b32 v41, v41 offset:{L_CARRY + 256}
        s_waitcnt lgkmcnt(0)
        v_readfirstlane_b32 s7, v40
        s_cmp_eq_u32 s7, 3
        s_cbranch_scc1 {L}_loop
        s_cmp_eq_u32 s7, 0
        s_cbranch_scc1 {L}_wr
        v_add_f32 v{freg}, v{freg}, v42
        v_add_f32 v{freg + 1}, v{freg + 1}, v41
        s_cmp_eq_u32 s7, 2
        s_cbranch_scc1 {L}_loop
        {L}_wr:''')
        if kind == 'V':
            write_v(freg, freg + 1, fnode)
        else:
            write_s(freg, freg + 1, fnode, f'{L}_done')
        a(f'{L}_done:')
    a(f'''
    v_lshlrev_b32 v40, 4, v0
    v_add_u32 v40, {L_OB}, v40
    s_waitcnt lgkmcnt(0)
    s_barrier
    ds_read_b128 {vr(OBR, 4)}, v40
    ds_read_b128 {vr(OBR + 4, 4)}, v40 offset:16384
    ds_read_b128 {vr(OBR + 8, 4)}, v40 offset:32768
    s_waitcnt vmcnt(0) lgkmcnt(0)
    ''')
    stamp(a, 7, SV)
    for it in range(3):
        if it == 2:
            a('''s_cmp_ge_u32 s30, 8
            s_cbranch_scc1 K2_EPI_DONE''')
        for x in range(4):
            s, o = SVR + it * 4 + x, OBR + it * 4 + x
            a(f'''v_lshlrev_b32 v{U}, 16, v{s}
            v_and_b32 v{U + 1}, v{vMask}, v{s}
            v_lshlrev_b32 v{U + 2}, 16, v{o}
            v_and_b32 v{U + 3}, v{vMask}, v{o}
            v_add_f32 v{U}, v{U}, v{U + 2}
            v_add_f32 v{U + 1}, v{U + 1}, v{U + 3}
            v_cvt_pk_bf16_f32 v{s}, v{U}, v{U + 1}''')
        a(f'''s_mov_b64 exec, {sr(60 + 2 * it, 2)}
        buffer_store_dwordx4 {vr(SVR + 4 * it, 4)}, v{46 + it}, s[48:51], 0 offen {OPT['out_store']}
        s_mov_b64 exec, -1''')
    a('K2_EPI_DONE:')
    stamp_out(a, SV, 's30', 1, 16)
    a('''s_endpgm
    K2_FALLBACK:
    K2_END:
    s_endpgm''')
    return a


def kernel_text(name, a):
    n = a.fix_hazards()
    nv, ns = a.max_regs()
    nv4 = (nv + 3) // 4 * 4
    body = f'.globl {name}\n.p2align 8\n.type {name},@function\n{name}:\n' + a.text()
    desc = f'''.p2align 6
.amdhsa_kernel {name}
  .amdhsa_next_free_vgpr {nv4}
  .amdhsa_next_free_sgpr {max(ns, 16)}
  .amdhsa_accum_offset {nv4}
  .amdhsa_group_segment_fixed_size 0
  .amdhsa_kernarg_size 88
  .amdhsa_user_sgpr_count 2
  .amdhsa_user_sgpr_kernarg_segment_ptr 1
  .amdhsa_system_sgpr_workgroup_id_x 1
  .amdhsa_float_denorm_mode_32 3
.end_amdhsa_kernel
'''
    print(f'{name}: vgpr {nv} sgpr {ns} nops inserted {n} instrs {sum(1 for k, _ in a.items if k == "i")}'
          f' bankconf {OPT.get("_bankconf", 0)}', file=sys.stderr)
    return body, desc


def main(out):
    hdr = open('cdna_kernels/' + NAME + '.s.ref').read().split('; Override launch')[0]
    launches = [
        f'; @launch kernel=painn_pre_kernel grid=({NK1},1,1) block=(512,1,1) lds={K1_LDS}',
        f'; @launch kernel=painn_main_kernel grid=(256,1,1) block=(1024,1,1) lds={L_TOTAL}',
    ]
    b1, d1 = kernel_text('painn_pre_kernel', gen_k1())
    b2, d2 = kernel_text('painn_main_kernel', gen_k2())
    txt = hdr + '\n'.join(launches) + '\n.amdgcn_target "amdgcn-amd-amdhsa--gfx950"\n.text\n' + b1 + b2
    txt += '.section .rodata,"a"\n' + d1 + d2
    open(out, 'w').write(txt)


if __name__ == '__main__':
    for kv in sys.argv[2:]:
        k, v = kv.split('=', 1)
        OPT[k] = int(v) if v.lstrip('-').isdigit() else v
    main(sys.argv[1] if len(sys.argv) > 1 else 'v2.s')
```

```python
import sys
from asmlib import Asm, vr, sr

N = 10000
E = 320000
NAME = 'standalone__molecular_angular_painn__graph'

TAB = N * 256
TABS_BASE = 4 * TAB
MISC_BASE = 5 * TAB
GT_OFF = 0
WRF_OFF = 65536
CNT_OFF = 77824
RECS_OFF = 98304
NCH = 64
CHUNK = 5120
CELL = 1536
OVF_OFF = RECS_OFF + 64 * NCH * CELL
MISC_SIZE = OVF_OFF + NCH * CHUNK * 12
BN = 157
SN = 40
DMIN = 0x38D2
GTOP = 0x40A1
NFAST = 1186

NG = 157
R_BIN = NG
R_GT = NG + NCH
R_WRF = R_GT + 4
NK1 = R_WRF + 2

G_FR1 = 0
G_FR2 = 32768
G_H = 131072
G_S = 147456
K1_LDS = 163840
B_POS = 0
B_HIST = 60416
B_STG = 61440
BCELL = 1552

L_G = 0
L_HIST = 38912
L_START = 39680
L_ST = 40448
L_FLAG = L_ST + 128
L_QN = 40704
L_R2 = 42240
L_WRF = 53760
L_CARRY = 59904
L_OB = 76288
L_REC = 117248
L_TOTAL = 163840
NBLK = 360
QCAP = 4 * (NBLK - 3)

OPT = dict(st='sc1', out_store='', stream=1, prio=1, round_phi=0, k1ld='', k2ld='', warm=0, vearly=4, skew=2, w2early=0, w2mid=2)
DBG_BASE = 32 << 20
MASK = '0xffff0000'


def stamp(a, idx, vreg, real=False):
    if not OPT.get('stamps'):
        return
    a(f'''{'s_memrealtime' if real else 's_memtime'} s[92:93]
    s_waitcnt lgkmcnt(0)
    v_writelane_b32 v{vreg}, s92, {idx}''')


def stamp_out(a, vreg, wave_s, kidx, nw):
    if not OPT.get('stamps'):
        return
    a('s_waitcnt vmcnt(0)')
    stamp(a, 8, vreg)
    stamp(a, 9, vreg, True)
    a(f'''s_mov_b64 exec, -1
    s_add_u32 s96, s24, {DBG_BASE + kidx * (4 << 20)}
    s_addc_u32 s97, s25, 0
    s_mov_b32 s98, {4 << 20}
    s_mov_b32 s99, 0x00020000
    s_mul_i32 s94, s2, {nw}
    s_add_u32 s94, s94, {wave_s}
    s_lshl_b32 s94, s94, 8
    v_and_b32 v1, 63, v0
    v_lshlrev_b32 v1, 2, v1
    buffer_store_dword v{vreg}, v1, s[96:99], s94 offen''')


def srd(a, d, lo, hi, size):
    a(f'''s_mov_b32 s{d}, {lo}
    s_mov_b32 s{d+1}, {hi}
    s_mov_b32 s{d+2}, {size}
    s_mov_b32 s{d+3}, 0x00020000''')


def srd_ws(a, d, off, size):
    a(f'''s_add_u32 s{d}, s24, {off}
    s_addc_u32 s{d+1}, s25, 0
    s_mov_b32 s{d+2}, {size}
    s_mov_b32 s{d+3}, 0x00020000''')


def bf16_round_pair(a, x, y, tmp):
    a(f'''v_cvt_pk_bf16_f32 v{tmp}, v{x}, v{y}
    v_lshlrev_b32 v{x}, 16, v{tmp}
    v_and_b32 v{y}, {MASK}, v{tmp}''')


def bf16_round1(a, x):
    a(f'''v_cvt_pk_bf16_f32 v{x}, v{x}, v{x}
    v_and_b32 v{x}, {MASK}, v{x}''')


def scan64(a, v):
    for sh in (1, 2, 4, 8):
        a(f'v_add_u32_dpp v{v}, v{v}, v{v} row_shr:{sh} row_mask:0xf bank_mask:0xf bound_ctrl:0')
    a(f'v_add_u32_dpp v{v}, v{v}, v{v} row_bcast:15 row_mask:0xa bank_mask:0xf')
    a(f'v_add_u32_dpp v{v}, v{v}, v{v} row_bcast:31 row_mask:0xc bank_mask:0xf')


def gen_k1():
    a = Asm()
    st = OPT['st']
    ld = OPT['k1ld']
    SV = 255
    a(f'''
    s_cmp_ge_u32 s2, {NK1}
    s_cbranch_scc1 K1_END
    s_load_dwordx16 s[8:23], s[0:1], 0
    s_load_dwordx2 s[24:25], s[0:1], 80
    v_and_b32 v1, 63, v0
    v_lshrrev_b32 v2, 4, v1
    v_and_b32 v3, 15, v1
    v_lshrrev_b32 v4, 6, v0
    v_readfirstlane_b32 s26, v4
    s_mov_b32 s54, 0x05040100
    s_mov_b32 s55, 0x07060302
    s_cmp_ge_u32 s2, {R_GT}
    s_cbranch_scc1 K1_MISC
    s_cmp_ge_u32 s2, {R_BIN}
    s_cbranch_scc1 K1_BIN
    ''')
    SF = 16
    W1R = 32
    W2R = 48
    VV = 96
    PO = 120
    AC = 152
    FB = 200
    TM = 232
    a(f"""
    s_and_b32 s27, s26, 3
    s_lshr_b32 s28, s26, 2
    s_lshl_b32 s29, s2, 2
    s_add_u32 s29, s29, s27
    s_lshl_b32 s30, s29, 4
    s_lshl_b32 s31, s28, 3
    v_add_u32 v5, s31, v2
    v_xor_b32 v6, v5, v3
    v_add_u32 v5, s30, v5
    v_lshlrev_b32 v5, 10, v5
    v_lshl_add_u32 v5, v6, 4, v5
    v_xor_b32 v248, 64, v5
    v_add_u32 v248, 0x1000, v248
    s_lshl_b32 s56, s27, 12
    s_lshl_b32 s3, s28, 11
    s_add_u32 s56, s56, s3
    s_add_u32 s56, s56, {G_S}
    s_add_u32 s57, s56, 1024
    v_lshlrev_b32 v6, 4, v3
    v_lshl_add_u32 v7, v2, 11, v6
    v_mul_u32_u24 v8, 6144, v2
    v_add_u32 v8, v8, v6
    v_lshl_add_u32 v9, v2, 2, s30
    v_lshlrev_b32 v10, 3, v3
    v_lshl_add_u32 v10, v9, 10, v10
    s_lshl_b32 s3, s28, 7
    v_add_u32 v10, s3, v10
    s_lshr_b32 s48, s26, 1
    s_lshl_b32 s48, s48, 13
    s_and_b32 s3, s26, 1
    s_lshl_b32 s4, s3, 10
    s_add_u32 s49, s48, s4
    s_lshl_b32 s3, s3, 3
    s_add_u32 s48, s48, s3
    v_lshrrev_b32 v11, 3, v3
    v_mul_u32_u24 v11, 0x1010, v11
    v_lshl_add_u32 v11, v2, 8, v11
    v_and_b32 v12, 7, v3
    v_lshl_add_u32 v11, v12, 5, v11
    v_add_u32 v12, s48, v11
    s_waitcnt lgkmcnt(0)
    """)
    stamp(a, 0, SV, True)
    stamp(a, 1, SV)
    srd(a, 32, 's8', 's9', N * 1024)
    srd(a, 36, 's18', 's19', 32768)
    a('s_mov_b32 m0, s56')
    for ii in range(4):
        a(f'buffer_load_dwordx4 {vr(W1R + 4 * ii, 4)}, v7, s[36:39], s49 offen offset:{ii * 256}')
    a(f"""buffer_load_dwordx4 v5, s[32:35], 0 offen {ld} lds
    s_mov_b32 m0, s57
    s_nop 0
    buffer_load_dwordx4 v248, s[32:35], 0 offen {ld} lds""")
    vl = [(r, k) for r in range(4) for k in range(3)]
    VE = OPT['vearly']

    def vload(lst):
        for r, k in lst:
            a(f'buffer_load_dwordx2 {vr(VV + (r * 3 + k) * 2, 2)}, v10, s[32:35], 0 offen '
              f'offset:{r * 1024 + (1 + k) * 256} {ld}')
    srd(a, 40, 's20', 's21', 98304)
    for x in range(3):
        a(f"""s_mul_i32 s3, s26, 3
        s_add_u32 s3, s3, {x}
        s_lshr_b32 s4, s3, 1
        s_and_b32 s3, s3, 1
        s_mul_i32 s5, s4, 43
        s_lshr_b32 s5, s5, 7
        s_mul_i32 s6, s5, 3
        s_sub_u32 s6, s4, s6
        s_mul_i32 s5, s5, 24576
        s_lshl_b32 s6, s6, 8
        s_add_u32 s5, s5, s6
        s_mul_i32 s6, s3, 3072
        s_add_u32 s{50 + x}, s5, s6
        s_lshl_b32 s4, s4, 13
        s_lshl_b32 s3, s3, 3
        s_add_u32 s4, s4, s3
        s_add_u32 s4, s4, {G_FR2}
        v_add_u32 v{13 + x}, s4, v11""")
    def w2load(x):
        for ii in range(4):
            a(f'buffer_load_dwordx4 {vr(W2R + 16 * x + 4 * ii, 4)}, v8, s[40:43], s{50 + x} offen offset:{ii * 768}')
    a("""s_lshr_b32 s3, s2, 3
    s_lshl_b32 s3, s3, 3
    s_add_u32 s3, s3, s26
    s_lshl_b32 s3, s3, 10
    v_lshlrev_b32 v253, 7, v1
    s_mov_b64 exec, 0xff
    buffer_load_dword v254, v253, s[40:43], s3 offen
    s_mov_b64 exec, -1""")
    a('s_barrier')
    vload(vl[:VE])
    W2E = OPT['w2early']
    for x in range(W2E):
        w2load(x)
    srd_ws(a, 44, 0, 5 * TAB)

    def half_unit(raw, po, addr):
        a(f'v_xor_b32 v253, 16, v{addr}')
        for t in range(8):
            c, pa = divmod(t, 2)
            sel = 's55' if pa else 's54'
            a(f"""v_perm_b32 v{po + 2 * t}, v{raw + 4 + c}, v{raw + c}, {sel}
            v_perm_b32 v{po + 2 * t + 1}, v{raw + 12 + c}, v{raw + 8 + c}, {sel}
            ds_write_b64 v{addr if t < 4 else 253}, {vr(po + 2 * t, 2)} offset:{(t & 3) * 1024}""")

    a(f"""
    v_lshlrev_b32 v11, 4, v1
    s_mul_i32 s3, s28, 0x1010
    v_xor_b32 v4, s3, v11
    s_lshl_b32 s3, s27, 12
    s_add_u32 s4, s3, {G_S}
    v_xor_b32 v249, v2, v3
    v_lshlrev_b32 v249, 4, v249
    v_lshl_add_u32 v249, v3, 8, v249
    v_add_u32 v249, s4, v249
    v_xor_b32 v250, 64, v249
    v_xor_b32 v251, 0x80, v249
    v_xor_b32 v252, 0xc0, v249
    s_add_u32 s3, s3, {G_H}
    v_add_u32 v5, s3, v11
    s_lshl_b32 s4, s28, 11
    s_add_u32 s3, s3, s4
    v_lshl_add_u32 v7, v2, 9, v6
    v_add_u32 v7, s3, v7
    s_waitcnt vmcnt({3 + VE + 4 * W2E})
    """)
    stamp(a, 2, SV)
    half_unit(W1R, PO, 12)
    W2M = OPT['w2mid']
    for x in range(W2E, W2M):
        w2load(x)
    a(f"""s_waitcnt vmcnt({1 + VE + 4 * W2M}) lgkmcnt(0)
    s_barrier""")
    for u in range(4):
        a(f'ds_read_b128 {vr(SF + 4 * u, 4)}, v{249 + u}')
    order = [(u, tt) for u in range(4) for tt in range(4)]
    for n, (u, tt) in enumerate(order[:8]):
        a(f'ds_read_b128 {vr(FB + 4 * n, 4)}, v4 offset:{(u * 8 + tt) * 1024}')
    NV2 = 12 - VE
    for n, (u, tt) in enumerate(order):
        a(f's_waitcnt lgkmcnt({min(7, 15 - n)})')
        d = AC + 4 * tt
        c = '0' if u == 0 else vr(d, 4)
        a(f'v_mfma_f32_16x16x32_bf16 {vr(d, 4)}, {vr(FB + 4 * (n & 7), 4)}, {vr(SF + 4 * u, 4)}, {c}')
        if n + 8 < 16:
            u2, t2 = order[n + 8]
            a(f'ds_read_b128 {vr(FB + 4 * (n & 7), 4)}, v4 offset:{(u2 * 8 + t2) * 1024}')
    stamp(a, 3, SV)
    for x in range(W2M, 3):
        w2load(x)
    for r in range(4):
        for p in range(2):
            xe, xo = AC + 4 * (2 * p) + r, AC + 4 * (2 * p + 1) + r
            t1, t2 = TM + 1 + 2 * p, TM + 2 + 2 * p
            bf16_round_pair(a, xe, xo, TM)
            a(f"""v_mul_f32 v{t1}, 0xbfb8aa3b, v{xe}
            v_mul_f32 v{t2}, 0xbfb8aa3b, v{xo}
            v_exp_f32 v{t1}, v{t1}
            v_exp_f32 v{t2}, v{t2}
            v_add_f32 v{t1}, 1.0, v{t1}
            v_add_f32 v{t2}, 1.0, v{t2}
            v_rcp_f32 v{t1}, v{t1}
            v_rcp_f32 v{t2}, v{t2}
            v_mul_f32 v{t1}, v{t1}, v{xe}
            v_mul_f32 v{t2}, v{t2}, v{xo}
            v_cvt_pk_bf16_f32 v{W1R + 2 * r + p}, v{t1}, v{t2}""")
        if r & 1:
            a(f'ds_write_b128 v7, {vr(W1R + 2 * (r - 1), 4)} offset:{(r >> 1) * 256}')
    vload(vl[VE:])
    a(f's_waitcnt vmcnt({8 + NV2})')
    half_unit(W2R, PO + 16, 13)
    a(f's_waitcnt vmcnt({4 + NV2})')
    half_unit(W2R + 16, PO, 14)
    a(f's_waitcnt vmcnt({NV2})')
    half_unit(W2R + 32, PO + 16, 15)
    a(f"""
    v_lshrrev_b32 v13, 3, v3
    s_mov_b32 s3, {TAB}
    v_mul_lo_u32 v8, v13, s3
    v_and_b32 v12, 7, v3
    v_lshlrev_b32 v12, 4, v12
    v_lshl_add_u32 v12, v9, 8, v12
    s_mul_i32 s3, s28, {2 * TAB}
    v_add3_u32 v8, v8, v12, s3
    s_lshl_b32 s3, s28, 7
    s_add_u32 s3, s3, {TABS_BASE}
    v_lshlrev_b32 v13, 8, v13
    v_add3_u32 v9, v12, v13, s3
    v_add_u32 v12, {G_FR2}, v4
    v_add_u32 v13, {G_FR2 + 49152}, v4
    s_waitcnt lgkmcnt(0)
    s_barrier
    s_cmp_ge_u32 s29, 625
    s_cbranch_scc1 K1_GEMM_END
    """)
    stamp(a, 4, SV)
    for u in range(4):
        a(f'ds_read_b128 {vr(SF + 4 * u, 4)}, v5 offset:{u * 1024}')
    items = [(u, 0, tt) for u in range(4) for tt in range(4)] + \
            [(u, ty, tt) for u in range(4) for ty in (1, 2) for tt in range(4)]

    def rd(n):
        u, ty, tt = items[n]
        a(f'ds_read_b128 {vr(FB + 4 * (n & 7), 4)}, v{12 if u < 2 else 13} '
          f'offset:{(((u & 1) * 3 + ty) * 8 + tt) * 1024}')

    def encode4(fields, out):
        if not OPT['stream']:
            for x in range(2):
                a(f'v_cvt_pk_bf16_f32 v{out + x}, v{fields[2 * x]}, v{fields[2 * x + 1]}')
            return
        for f in fields:
            a(f'v_add_u32 v{f}, 0x8000, v{f}')
        for x in range(1, 4):
            a(f'v_sub_u32_sdwa v{fields[x]}, v{fields[x]}, v{fields[x - 1]} dst_sel:DWORD dst_unused:UNUSED_PAD '
              f'src0_sel:DWORD src1_sel:WORD_1')
        for x in range(2):
            a(f'v_perm_b32 v{out + x}, v{fields[2 * x + 1]}, v{fields[2 * x]}, s55')

    def s_epi(rp):
        o = W2R + rp * 8
        for h in range(2):
            f = [AC + t * 4 + 2 * rp + h for t in range(4)]
            if OPT['stream']:
                for x in f:
                    a(f'v_add_f32 v{x}, 0x00800000, v{x}')
            encode4(f, o + 2 * h)
        a(f"""v_mov_b32 v{o + 4}, v{o}
        v_mov_b32 v{o + 5}, v{o + 1}
        v_mov_b32_dpp v{o}, v{o + 2} row_ror:8 row_mask:0xf bank_mask:0xc
        v_mov_b32_dpp v{o + 1}, v{o + 3} row_ror:8 row_mask:0xf bank_mask:0xc
        v_mov_b32_dpp v{o + 2}, v{o + 4} row_ror:8 row_mask:0xf bank_mask:0x3
        v_mov_b32_dpp v{o + 3}, v{o + 5} row_ror:8 row_mask:0xf bank_mask:0x3
        buffer_store_dwordx4 {vr(o, 4)}, v9, s[44:47], 0 offen offset:{rp * 512} {st}""")

    for n in range(8):
        rd(n)
    for n, (u, ty, tt) in enumerate(items):
        a(f's_waitcnt lgkmcnt({min(7, len(items) - 1 - n)})')
        d = AC + (ty * 4 + tt) * 4
        c = '0' if u == 0 else vr(d, 4)
        a(f'v_mfma_f32_16x16x32_bf16 {vr(d, 4)}, {vr(SF + 4 * u, 4)}, {vr(FB + 4 * (n & 7), 4)}, {c}')
        if n + 8 < len(items):
            rd(n + 8)
        if n == 23:
            s_epi(0)
        if n == 35:
            s_epi(1)
    stamp(a, 5, SV)
    a('s_waitcnt vmcnt(2)')
    stamp(a, 6, SV)
    for r in range(4):
        for x in range(2):
            o = PO + ((r * 2 + x) & 3) * 4
            t0 = PO + 16 + ((r * 2 + x) & 1) * 8
            fa, fb = AC + (4 + 2 * x) * 4 + r, AC + (4 + 2 * x + 1) * 4 + r
            ra, rb = AC + (8 + 2 * x) * 4 + r, AC + (8 + 2 * x + 1) * 4 + r
            if OPT['round_phi']:
                bf16_round_pair(a, fa, fb, TM)
            for k in range(3):
                sreg = VV + (r * 3 + k) * 2 + x
                a(f"""v_lshlrev_b32 v{t0 + 2 * k}, 16, v{sreg}
                v_and_b32 v{t0 + 2 * k + 1}, {MASK}, v{sreg}""")
            for k in range(3):
                if OPT['stream']:
                    a(f"""v_fmaak_f32 v{t0 + 2 * k}, v{t0 + 2 * k}, v{fa}, 0x00800000
                    v_fmaak_f32 v{t0 + 2 * k + 1}, v{t0 + 2 * k + 1}, v{fb}, 0x00800000""")
                else:
                    a(f"""v_mul_f32 v{t0 + 2 * k}, v{t0 + 2 * k}, v{fa}
                    v_mul_f32 v{t0 + 2 * k + 1}, v{t0 + 2 * k + 1}, v{fb}""")
            if OPT['stream']:
                a(f"""v_add_f32 v{ra}, 0x00800000, v{ra}
                v_add_f32 v{rb}, 0x00800000, v{rb}""")
            encode4([t0, t0 + 1, t0 + 2, t0 + 3], o)
            encode4([t0 + 4, t0 + 5, ra, rb], o + 2)
            a(f'buffer_store_dwordx4 {vr(o, 4)}, v8, s[44:47], 0 offen offset:{r * 256 + x * 128} {st}')
    a('K1_GEMM_END:')
    stamp(a, 7, SV)
    stamp_out(a, SV, 's26', 0, 8)
    a('s_endpgm')

    SRC, DST = 8, 20
    PP = 32
    RC = 64
    BK = 104
    T = 116
    a('K1_BIN:')
    a(f'''
    s_sub_u32 s27, s2, {R_BIN}
    s_mul_i32 s48, s27, {CHUNK * 4}
    v_lshlrev_b32 v4, 4, v0
    v_add_u32 v5, 0x2000, v4
    v_lshlrev_b32 v6, 3, v0
    v_add_u32 v6, 0x4000, v6
    v_lshlrev_b32 v7, 4, v1
    v_mov_b32 v30, 0
    v_lshlrev_b32 v31, 2, v0
    v_cmp_gt_u32 vcc, 80, v0
    s_mov_b64 exec, vcc
    ds_write_b32 v31, v30 offset:{B_HIST}
    s_mov_b64 exec, -1
    s_lshl_b32 s49, s26, 13
    s_waitcnt lgkmcnt(0)
    ''')
    stamp(a, 0, SV, True)
    stamp(a, 1, SV)
    srd(a, 28, 's12', 's13', E * 4)
    srd(a, 32, 's14', 's15', E * 4)
    srd(a, 36, 's10', 's11', N * 6)
    a(f"""
    buffer_load_dwordx4 {vr(SRC, 4)}, v4, s[28:31], s48 offen {ld}
    buffer_load_dwordx4 {vr(DST, 4)}, v4, s[32:35], s48 offen {ld}""")
    for x in range(8):
        if x == 3:
            a("""s_cmp_eq_u32 s26, 7
            s_cbranch_scc1 K1_BIN_POSDONE""")
        if x == 4:
            a('s_add_u32 s49, s49, 4096')
        if x in (0, 4):
            a('s_mov_b32 m0, s49')
        a(f'buffer_load_dwordx4 v7, s[36:39], s49 offen offset:{(x & 3) * 1024} lds')
    a(f"""K1_BIN_POSDONE:
    s_barrier
    buffer_load_dwordx4 {vr(SRC + 4, 4)}, v5, s[28:31], s48 offen {ld}
    buffer_load_dwordx4 {vr(DST + 4, 4)}, v5, s[32:35], s48 offen {ld}
    buffer_load_dwordx2 {vr(SRC + 8, 2)}, v6, s[28:31], s48 offen {ld}
    buffer_load_dwordx2 {vr(DST + 8, 2)}, v6, s[32:35], s48 offen {ld}
    s_sub_i32 s50, {E * 4}, s48
    v_cmp_gt_i32 s[84:85], s50, v4
    v_cmp_gt_i32 s[86:87], s50, v5
    v_cmp_gt_i32 s[88:89], s50, v6
    s_movk_i32 s51, 6679
    s_mov_b64 s[90:91], 0
    v_mov_b32 v31, 1
    """)
    srd_ws(a, 40, MISC_BASE, MISC_SIZE)
    for x in range(24):
        a(f'v_mov_b32 v{PP + x}, 0')
    a('''s_waitcnt vmcnt(4)
    s_barrier''')
    stamp(a, 2, SV)

    def posread(p):
        if p == 4:
            a('s_waitcnt vmcnt(2)')
        if p == 8:
            a('s_waitcnt vmcnt(0)')
        b = PP + (p % 4) * 6
        a(f'''v_mul_u32_u24 v{T}, 6, v{SRC + p}
        v_mul_u32_u24 v{T + 1}, 6, v{DST + p}''')
        for k in range(3):
            a(f'ds_read_u16_d16_hi v{b + k}, v{T} offset:{2 * k}')
            a(f'ds_read_u16_d16_hi v{b + 3 + k}, v{T + 1} offset:{2 * k}')

    def stage(p):
        R = RC + 4 * p
        a(f"""v_min_u32 v{T}, 0x80, v{R + 3}
        v_mad_u32_u24 v{T + 1}, v{BK + p}, v{T + 16}, v{T + 17}
        v_mad_u32_u24 v{T}, v{T}, 12, v{T + 1}
        s_mov_b64 exec, {sr(60 + 2 * p, 2)}
        ds_write2_b32 v{T}, v{R}, v{R + 1} offset0:0 offset1:1
        ds_write_b32 v{T}, v{R + 2} offset:8
        s_mov_b64 exec, -1""")

    posread(0); posread(1)
    for pp in range(5):
        P = (2 * pp, 2 * pp + 1)
        if pp < 4:
            posread(2 * pp + 2); posread(2 * pp + 3)
        a(f's_waitcnt lgkmcnt({12 if pp < 4 else 0})')
        X = [[T + 2, T + 3, T + 4], [T + 5, T + 6, T + 7]]
        Q = [[T + 10, T + 11, T + 12], [T + 13, T + 14, T + 15]]
        tmp = T + 8
        for e in range(2):
            b = PP + (P[e] % 4) * 6
            for k in range(3):
                a(f'v_sub_f32 v{X[e][k]}, v{b + k}, v{b + 3 + k}')
        if pp:
            stage(2 * pp - 2); stage(2 * pp - 1)
        bf16_round_pair(a, X[0][0], X[0][1], tmp)
        bf16_round_pair(a, X[1][0], X[1][1], tmp)
        bf16_round_pair(a, X[0][2], X[1][2], tmp)
        for e in range(2):
            for k in range(3):
                a(f'v_mul_f32 v{Q[e][k]}, v{X[e][k]}, v{X[e][k]}')
        bf16_round_pair(a, Q[0][0], Q[0][1], tmp)
        bf16_round_pair(a, Q[1][0], Q[1][1], tmp)
        bf16_round_pair(a, Q[0][2], Q[1][2], tmp)
        for e in range(2):
            a(f'v_add_f32 v{Q[e][0]}, v{Q[e][0]}, v{Q[e][1]}')
        for e in range(2):
            a(f"""v_add_f32 v{Q[e][0]}, v{Q[e][0]}, v{Q[e][2]}
            v_mul_u32_u24 v{BK + P[e]}, s51, v{DST + P[e]}""")
        bf16_round_pair(a, Q[0][0], Q[1][0], tmp)
        for e in range(2):
            a(f"""v_add_f32 v{Q[e][0]}, 0x322bcc77, v{Q[e][0]}
            v_lshrrev_b32 v{BK + P[e]}, 18, v{BK + P[e]}""")
        bf16_round_pair(a, Q[0][0], Q[1][0], tmp)
        for e in range(2):
            a(f'v_sqrt_f32 v{Q[e][0]}, v{Q[e][0]}')
        for e in range(2):
            a(f'v_and_b32 v{BK + P[e]}, -4, v{BK + P[e]}')
        bf16_round_pair(a, Q[0][0], Q[1][0], tmp)
        vm = 84 + 2 * min(P[0] // 4, 2)
        for e in range(2):
            a(f"""v_cmp_gt_f32 vcc, 0x40a00000, v{Q[e][0]}
            v_rcp_f32 v{Q[e][1]}, v{Q[e][0]}
            s_and_b64 {sr(60 + 2 * P[e], 2)}, vcc, {sr(vm, 2)}""")
        for e in range(2):
            a(f"""s_mov_b64 exec, {sr(60 + 2 * P[e], 2)}
            ds_add_rtn_u32 v{RC + 4 * P[e] + 3}, v{BK + P[e]}, v31 offset:{B_HIST}""")
        for e in (1, 0):
            p = P[e]
            R = RC + 4 * p
            x0, x1, x2 = X[e]
            q0, q1, q2 = Q[e]
            if e == 0:
                a(f's_mov_b64 exec, {sr(60 + 2 * p, 2)}')
            a(f"""v_lshrrev_b32 v{q0}, 11, v{q0}
            v_sub_u32 v{q0}, {GTOP * 32}, v{q0}
            v_cmp_ne_u32 vcc, {1999 * 32}, v{q0}
            v_fmaak_f32 v{x0}, v{x0}, v{q1}, 0x00800000
            v_fmaak_f32 v{x1}, v{x1}, v{q1}, 0x00800000
            v_mul_f32 v{x2}, v{x2}, v{q1}
            v_cndmask_b32 v{q0}, 32, v{q0}, vcc
            v_sub_u32 v{x0}, v{x0}, v{SRC + p}
            v_cvt_pk_bf16_f32 v{x2}, v{x2}, v{x2}
            v_sub_u32 v{x1}, v{x1}, v{q0}
            v_add_u32 v{x0}, 0x8000, v{x0}
            v_add_u32 v{x1}, 0x8000, v{x1}
            v_cmp_lt_u32 vcc, {NFAST * 32 - 1}, v{q0}
            v_and_or_b32 v{R}, v{x0}, v{T + 9}, v{SRC + p}
            v_and_or_b32 v{R + 1}, v{x1}, v{T + 9}, v{q0}
            v_perm_b32 v{R + 2}, v{DST + p}, v{x2}, s54
            s_or_b64 s[90:91], s[90:91], vcc""")
        a('s_mov_b64 exec, -1')
    stamp(a, 3, SV)
    a('s_waitcnt lgkmcnt(0)')
    stage(8); stage(9)
    a(f"""
    v_mov_b32 v4, {B_HIST + 256}
    s_mov_b64 exec, s[90:91]
    ds_write_b32 v4, v31
    s_mov_b64 exec, -1
    v_lshlrev_b32 v6, 2, v1
    s_mul_i32 s3, s26, {8 * BCELL}
    s_add_u32 s3, s3, {B_STG}
    v_add_u32 v5, s3, v7
    s_mul_i32 s51, s26, {8 * NCH * CELL}
    s_mul_i32 s3, s27, {CELL}
    s_add_u32 s51, s51, s3
    s_add_u32 s51, s51, {RECS_OFF}
    s_waitcnt lgkmcnt(0)
    s_barrier
    ds_read_b32 v8, v6 offset:{B_HIST}
    ds_read_b32 v30, v4
    """)
    stamp(a, 4, SV)
    a('s_mov_b32 exec_hi, 0xffff')
    for c in range(8):
        a(f'ds_read_b128 {vr(PP + 4 * c, 4)}, v5 offset:{c * BCELL}')
    for c in range(8):
        a(f"""s_waitcnt lgkmcnt({7 - c})
        buffer_store_dwordx4 {vr(PP + 4 * c, 4)}, v7, s[40:43], s51 offen {st}
        s_add_u32 s51, s51, {NCH * CELL}""")
    a(f"""
    s_mov_b64 exec, -1
    v_cmp_lt_u32 vcc, 64, v8
    s_lshl_b32 s3, s26, 3
    s_lshr_b64 s[56:57], vcc, s3
    s_sub_u32 s51, s51, {8 * NCH * CELL}
    s_mov_b32 exec_hi, 0xffff
    """)
    for c in range(8):
        a(f"""s_bitcmp1_b32 s56, {c}
        s_cbranch_scc0 K1_BIN_X{c}
        ds_read_b128 {vr(PP + 4 * c, 4)}, v5 offset:{c * BCELL + 768}
        s_waitcnt lgkmcnt(0)
        buffer_store_dwordx4 {vr(PP + 4 * c, 4)}, v7, s[40:43], s51 offen offset:768 {st}
        K1_BIN_X{c}:
        s_add_u32 s51, s51, {NCH * CELL}""")
    a(f"""
    s_mov_b64 exec, -1
    v_cmp_lt_u32 vcc, 0x80, v8
    s_cbranch_vccz K1_BIN_CNT
    s_mul_i32 s51, s27, {CHUNK * 12}
    s_add_u32 s51, s51, {OVF_OFF}
    """)
    for p in range(10):
        R = RC + 4 * p
        a(f"""v_cmp_lt_u32 vcc, 0x7f, v{R + 3}
        s_and_b64 exec, vcc, {sr(60 + 2 * p, 2)}
        ds_add_rtn_u32 v{T}, v4, v31 offset:4
        s_waitcnt lgkmcnt(0)
        v_mul_u32_u24 v{T}, 12, v{T}
        buffer_store_dwordx3 {vr(R, 3)}, v{T}, s[40:43], s51 offen
        s_mov_b64 exec, -1""")
    a(f"""
    s_barrier
    K1_BIN_CNT:
    s_cmp_lg_u32 s26, 0
    s_cbranch_scc1 K1_BIN_DONE
    ds_read_b32 v10, v4 offset:4
    s_lshl_b32 s50, s27, 2
    s_add_u32 s50, s50, {CNT_OFF}
    v_lshlrev_b32 v4, 8, v1
    v_lshl_or_b32 v9, v30, 31, v8
    buffer_store_dword v9, v4, s[40:43], s50 offen {st}
    s_mov_b64 exec, 1
    s_add_u32 s50, s50, {64 * 256}
    s_waitcnt lgkmcnt(0)
    buffer_store_dword v10, v4, s[40:43], s50 offen {st}
    """)
    a('K1_BIN_DONE:')
    stamp(a, 7, SV)
    stamp_out(a, SV, 's26', 0, 8)
    a('s_endpgm')

    a(f'''K1_MISC:
    s_cmp_ge_u32 s2, {R_WRF}
    s_cbranch_scc1 K1_WRF
    s_sub_u32 s27, s2, {R_GT}
    s_lshl_b32 s27, s27, 9
    v_add_u32 v4, s27, v0
    v_sub_u32 v5, {GTOP}, v4
    v_mov_b32 v6, {DMIN}
    v_cmp_gt_u32 vcc, 2, v4
    v_cndmask_b32 v5, v5, v6, vcc
    s_waitcnt lgkmcnt(0)
    s_load_dwordx8 s[28:35], s[16:17], 0
    ''')
    srd_ws(a, 40, MISC_BASE + GT_OFF, 64000)
    a('''v_lshlrev_b32 v5, 16, v5
    v_rcp_f32 v6, v5
    v_mul_f32 v7, 0x40490fdb, v5''')
    bf16_round1(a, 7)
    a('v_mul_f32 v7, 0x3e4ccccd, v7')
    bf16_round1(a, 7)
    a('''v_mul_f32 v7, 0x3e22f983, v7
    v_cos_f32 v7, v7''')
    bf16_round1(a, 7)
    a('v_add_f32 v7, 1.0, v7')
    bf16_round1(a, 7)
    a('''v_mul_f32 v7, 0.5, v7
    v_cmp_ne_u32 vcc, 0, v4
    v_cndmask_b32 v7, 0, v7, vcc
    s_waitcnt lgkmcnt(0)''')
    for k2 in range(8):
        a(f'''s_lshl_b32 s36, s{28 + k2}, 16
        s_and_b32 s37, s{28 + k2}, 0xffff0000
        v_mul_f32 v8, s36, v5
        v_mul_f32 v9, s37, v5''')
        bf16_round_pair(a, 8, 9, 10)
        a('''v_mul_f32 v8, 0x3e22f983, v8
        v_mul_f32 v9, 0x3e22f983, v9
        v_rndne_f32 v10, v8
        v_rndne_f32 v11, v9
        v_sub_f32 v8, v8, v10
        v_sub_f32 v9, v9, v11
        v_sin_f32 v8, v8
        v_sin_f32 v9, v9''')
        bf16_round_pair(a, 8, 9, 10)
        a('''v_mul_f32 v8, v8, v6
        v_mul_f32 v9, v9, v6''')
        bf16_round_pair(a, 8, 9, 10)
        a(f'''v_mul_f32 v8, v8, v7
        v_mul_f32 v9, v9, v7
        v_cvt_pk_bf16_f32 v{16 + k2}, v8, v9''')
    a(f'''v_lshlrev_b32 v4, 5, v4
    buffer_store_dwordx4 v[16:19], v4, s[40:43], 0 offen {st}
    buffer_store_dwordx4 v[20:23], v4, s[40:43], 0 offen offset:16 {st}
    s_endpgm
    K1_WRF:
    s_waitcnt lgkmcnt(0)
    ''')
    srd(a, 28, 's22', 's23', 16 * 768)
    srd_ws(a, 40, MISC_BASE + WRF_OFF, 12288)
    a(f'''
    v_mul_u32_u24 v4, 3072, v2
    v_and_b32 v5, 7, v3
    v_lshl_add_u32 v4, v5, 3, v4
    v_lshrrev_b32 v6, 3, v3
    v_lshlrev_b32 v8, 4, v0
    s_cmp_eq_u32 s2, {R_WRF}
    s_cbranch_scc0 K1_WRF_S
    s_and_b32 s3, s26, 1
    s_add_u32 s3, s3, 1
    s_lshl_b32 s3, s3, 8
    s_lshr_b32 s4, s26, 1
    s_lshl_b32 s4, s4, 6
    s_add_u32 s3, s3, s4
    v_lshl_add_u32 v4, v6, 2, v4
    s_branch K1_WRF_GO
    K1_WRF_S:
    s_and_b32 s3, s26, 1
    s_lshl_b32 s3, s3, 2
    s_and_b32 s4, s26, 2
    s_lshl_b32 s4, s4, 5
    s_add_u32 s3, s3, s4
    v_lshl_add_u32 v4, v6, 7, v4
    v_add_u32 v8, 0x2000, v8
    K1_WRF_GO:
    buffer_load_dword v12, v4, s[28:31], s3 offen
    buffer_load_dword v13, v4, s[28:31], s3 offen offset:768
    buffer_load_dword v14, v4, s[28:31], s3 offen offset:1536
    buffer_load_dword v15, v4, s[28:31], s3 offen offset:2304
    s_waitcnt vmcnt(0)
    v_perm_b32 v16, v13, v12, s54
    v_perm_b32 v17, v15, v14, s54
    v_perm_b32 v18, v13, v12, s55
    v_perm_b32 v19, v15, v14, s55
    buffer_store_dwordx4 v[16:19], v8, s[40:43], 0 offen {st}
    K1_END:
    s_endpgm''')
    items = a.items
    for i, (k, x) in enumerate(items):
        if k == 'l' and x == 'K1_BIN_POSDONE':
            from asmlib import Ins
            items.insert(i + 1, ('i', Ins(f'v_mov_b32 v{T + 9}, {MASK}')))
            items.insert(i + 1, ('i', Ins(f'v_mov_b32 v{T + 16}, {BCELL // 4}')))
            items.insert(i + 1, ('i', Ins(f'v_mov_b32 v{T + 17}, {B_STG}')))
            break
    return a


def gen_k2():
    a = Asm()
    stream = OPT['stream']
    SV = 127
    D = 8
    W = 24
    BWV = 56
    BWS = 64
    A = 80
    GA, QN = 82, 83
    SR = 84
    RH = 88
    ACC = 96
    U = 104
    Z = 112
    FV, FS = 116, 118
    cGA, cLM, cQ8 = 120, 121, 122
    aZ, aR1, aR2 = 123, 124, 125
    aS = 126
    vMask = 3
    vO1, vO2, vOS, vX = 4, 5, 6, 7
    vE, vEs = 2, 76
    SVR = [BWS, BWS + 4, BWS + 8]
    EST = RH + 4
    REC = 8
    HA = 44
    SQ = 84
    QOFF = L_QN + 4 - L_REC // 32
    ZOFF = L_R2 - L_REC // 4

    a(f'''
    s_cmp_ge_u32 s2, 256
    s_cbranch_scc1 K2_END
    s_load_dwordx2 s[24:25], s[0:1], 80
    s_load_dwordx2 s[44:45], s[0:1], 0
    s_load_dwordx2 s[48:49], s[0:1], 64
    v_lshrrev_b32 v4, 6, v0
    v_and_b32 v1, 63, v0
    v_readfirstlane_b32 s30, v4
    v_lshrrev_b32 v2, 4, v1
    v_and_b32 v3, 15, v1
    s_and_b32 s26, s2, 3
    s_lshr_b32 s27, s2, 3
    s_lshl_b32 s27, s27, 1
    s_bfe_u32 s3, s2, 0x10002
    s_add_u32 s27, s27, s3
    s_lshl_b32 s6, s27, 4
    s_add_u32 s6, s6, s30
    s_mul_i32 s7, s6, {4 * CELL}
    s_add_u32 s7, s7, {RECS_OFF}
    s_lshl_b32 s6, s6, 4
    s_add_u32 s6, s6, {MISC_BASE + CNT_OFF}
    s_add_u32 s8, s7, {2 * CELL}
    v_mul_u32_u24 v100, 12, v1
    s_mov_b32 s42, {MISC_SIZE}
    s_mov_b32 s43, 0x00020000
    v_lshlrev_b32 v5, 4, v0
    v_mov_b32 v104, 0xffff
    v_mov_b32 v105, 0
    v_mov_b32 v106, 0xffff
    v_mov_b32 v107, 0
    v_add_u32 v103, {L_REC}, v5
    s_waitcnt lgkmcnt(0)
    ''')
    stamp(a, 0, SV, True)
    stamp(a, 1, SV)
    a(f'''
    s_add_u32 s40, s24, {MISC_BASE}
    s_addc_u32 s41, s25, 0
    s_load_dwordx4 s[12:15], s[24:25], s6
    buffer_load_dwordx3 {vr(REC, 3)}, v100, s[40:43], s7 offen
    buffer_load_dwordx3 {vr(REC + 4, 3)}, v100, s[40:43], s7 offen offset:{CELL}
    buffer_load_dwordx3 {vr(REC + 8, 3)}, v100, s[40:43], s8 offen
    buffer_load_dwordx3 {vr(REC + 12, 3)}, v100, s[40:43], s8 offen offset:{CELL}
    ds_write_b128 v103, v[104:107]
    ds_write_b128 v103, v[104:107] offset:16384
    v_cmp_gt_u32 vcc, {(L_TOTAL - L_REC) // 16 - 2048}, v0
    v_mov_b32 v108, 0
    v_mov_b32 v109, 0
    v_mov_b32 v110, 0
    v_mov_b32 v111, 0
    s_mov_b64 exec, vcc
    ds_write_b128 v103, v[104:107] offset:32768
    s_mov_b64 exec, -1
    v_cmp_gt_u32 vcc, {(L_WRF - L_HIST) // 16}, v0
    s_mov_b64 exec, vcc
    ds_write_b128 v5, v[108:111] offset:{L_HIST}
    s_mov_b64 exec, -1
    s_mul_i32 s28, s27, {BN}
    s_mul_i32 s10, s27, {-4 * BN}
    s_sub_u32 s29, {N}, s28
    s_min_u32 s29, s29, {BN}
    s_mul_i32 s18, s26, {SN}
    s_min_u32 s18, s18, s29
    s_add_u32 s19, s18, {SN}
    s_min_u32 s19, s19, s29
    s_mov_b32 s46, {N * 1024}
    s_mov_b32 s47, 0x00020000
    v_lshlrev_b32 v101, 4, v1
    ''')
    def dma():
        a(f'''
        s_lshl_b32 s3, s30, 10
        s_add_u32 s4, s3, 0x4000
        s_mov_b32 m0, s3
        s_add_u32 s5, s3, 0x8000
        buffer_load_dwordx4 v101, s[40:43], s3 offen lds
        s_mov_b32 m0, s4
        s_lshl_b32 s6, s26, 11
        buffer_load_dwordx4 v101, s[40:43], s4 offen lds
        s_add_u32 s6, s6, {WRF_OFF - 6144}
        s_cmp_ge_u32 s30, 8
        s_cselect_b32 s6, {WRF_OFF}, s6
        s_add_u32 s6, s6, s3
        s_add_u32 s4, s3, {L_WRF - 6144}
        s_cmp_lt_u32 s30, 6
        s_cselect_b32 s4, s5, s4
        s_cselect_b32 s6, s5, s6
        s_cmp_ge_u32 s30, 12
        s_cselect_b32 s4, {L_CARRY}, s4
        s_mov_b32 m0, s4
        s_nop 0
        buffer_load_dwordx4 v101, s[40:43], s6 offen lds
        ''')

    if OPT['warm'] == 2:
        dma()
    a('''v_mov_b32 v99, 1
    s_waitcnt lgkmcnt(0)''')
    stamp(a, 2, SV)
    a(f'''
    s_max_u32 s3, s12, s13
    s_max_u32 s4, s14, s15
    s_max_u32 s16, s3, s4
    s_mov_b32 s17, 0
    v_cmp_gt_u32 s[60:61], s12, v1
    v_cmp_gt_u32 s[62:63], s13, v1
    v_cmp_gt_u32 s[64:65], s14, v1
    v_cmp_gt_u32 s[66:67], s15, v1
    s_cmp_le_u32 s16, 64
    s_cbranch_scc1 K2_M_DONE
    ''')
    a(f'''
    v_mov_b32 v105, s12
    v_mov_b32 v106, s13
    v_mov_b32 v107, s14
    v_mov_b32 v108, s15
    s_mov_b32 s4, 0xffff0000
    s_mov_b32 s5, 0
    v_cndmask_b32 v105, v105, v106, s[4:5]
    s_mov_b32 s4, 0
    s_mov_b32 s5, 0xffff
    v_cndmask_b32 v105, v105, v107, s[4:5]
    s_mov_b32 s5, 0xffff0000
    v_cndmask_b32 v105, v105, v108, s[4:5]
    v_and_b32 v106, 15, v1
    v_add_u32 v106, 64, v106
    v_cmp_gt_u32 s[68:69], v105, v106
    v_mul_u32_u24 v102, {CELL - 192}, v2
    v_add_u32 v102, v102, v100
    s_mov_b64 exec, s[68:69]
    buffer_load_dwordx3 {vr(REC + 16, 3)}, v102, s[40:43], s7 offen offset:768
    s_mov_b64 exec, -1
    s_cmp_le_u32 s16, 80
    s_cbranch_scc1 K2_M_DONE
    s_cmp_le_u32 s16, 128
    s_cbranch_scc1 K2_M_X
    s_mov_b32 s17, 1
    s_mov_b32 s16, 0
    s_mov_b64 s[60:61], 0
    s_mov_b64 s[62:63], 0
    s_mov_b64 s[64:65], 0
    s_mov_b64 s[66:67], 0
    s_branch K2_M_DONE
    K2_M_X:
    v_add_u32 v106, 80, v1
    ''')
    for x in range(4):
        a(f'''v_cmp_gt_u32 {sr(70 + 2 * x, 2)}, s{12 + x}, v106
        s_mov_b64 exec, {sr(70 + 2 * x, 2)}
        buffer_load_dwordx3 {vr(REC + 20 + 4 * x, 3)}, v100, s[40:43], s{7 + x // 2} offen offset:{960 + (x & 1) * CELL}
        s_mov_b64 exec, -1''')
    a(f'''K2_M_DONE:
    s_barrier
    s_cmp_eq_u32 s17, 0
    s_cbranch_scc1 K2_NOFLAG
    v_mov_b32 v105, {L_FLAG}
    ds_write_b32 v105, v99
    K2_NOFLAG:
    s_waitcnt vmcnt(0)''')

    warm = OPT['warm']

    def touch():
        a(f'''s_lshr_b32 s3, s2, 3
        s_lshl_b32 s3, s3, 4
        s_add_u32 s3, s3, s30
        s_mul_i32 s3, s3, 5120
        s_mul_i32 s4, s26, {TAB}
        s_add_u32 s3, s3, s4
        v_lshlrev_b32 v98, 7, v1
        s_mov_b32 exec_hi, 0xff
        buffer_load_dword v119, v98, s[52:55], s3 offen
        s_mov_b64 exec, -1''')
    if warm:
        srd(a, 52, 's24', 's25', 5 * TAB)
    if warm == 2:
        touch()

    stamp(a, 3, SV)

    def for_records(fn, tag):
        for x in range(4):
            a(f's_mov_b64 exec, {sr(60 + 2 * x, 2)}')
            fn(x)
        a(f'''s_cmp_le_u32 s16, 64
        s_cbranch_scc1 {tag}
        s_mov_b64 exec, s[68:69]''')
        fn(4)
        a(f'''s_cmp_le_u32 s16, 80
        s_cbranch_scc1 {tag}''')
        for x in range(5, 9):
            a(f's_mov_b64 exec, {sr(60 + 2 * x, 2)}')
            fn(x)
        a(f'''{tag}:
        s_mov_b64 exec, -1''')

    def f_hist(x):
        R = REC + 4 * x
        a(f'''v_mad_u32_u16 v{HA + x}, v{R + 2}, 4, s10 op_sel:[1,0,0,0]
        ds_add_rtn_u32 v{R + 3}, v{HA + x}, v99 offset:{L_HIST}''')
    for_records(f_hist, 'K2_H_DONE')
    def setup():
        if warm != 2:
            dma()
        a(f'''
        v_lshlrev_b32 v{cQ8}, 3, v2
        v_and_b32 v106, 3, v3
        v_lshrrev_b32 v107, 2, v3
        v_lshlrev_b32 v{cGA}, 5, v106
        v_lshl_add_u32 v{cGA}, v107, 3, v{cGA}
        v_sub_u32 v{cGA}, v{cGA}, v{cQ8}
        v_lshlrev_b32 v{cLM}, 4, v3
        v_and_b32 v104, 7, v3
        v_lshrrev_b32 v105, 3, v3
        v_lshlrev_b32 v104, 3, v104
        v_lshrrev_b32 v109, 1, v2
        v_and_b32 v111, 1, v2
        v_lshl_add_u32 v108, v105, 2, v104
        v_lshl_add_u32 v108, v109, 1, v108
        v_add_u32 v{vO2}, {L_OB + 192 - 256}, v108
        v_lshl_add_u32 v108, v111, 6, v108
        v_add_u32 v{vO1}, {L_OB + 64 - 256}, v108
        v_lshl_add_u32 v108, v105, 9, v104
        v_lshl_add_u32 v108, v109, 8, v108
        v_lshl_add_u32 v108, v111, 2, v108
        v_add_u32 v{vOS}, {L_OB}, v108
        s_sub_u32 s20, s19, s18
        v_mov_b32 v{vMask}, {MASK}
        ''')
        sk = OPT['skew']
        a(f'''
        s_mul_i32 s4, s26, {TAB}
        s_add_u32 s32, s24, s4
        s_addc_u32 s33, s25, 0
        s_mov_b32 s34, {TAB}
        s_mov_b32 s35, 0x00020000
        s_add_u32 s36, s24, {TABS_BASE}
        s_addc_u32 s37, s25, 0
        v_mov_b32 v{Z}, 0
        v_mov_b32 v{Z + 1}, 0
        v_mov_b32 v{Z + 2}, 0
        v_mov_b32 v{Z + 3}, 0
        v_mov_b32 v110, 0
        s_lshl_b32 s3, s18, 2
        v_writelane_b32 v110, s3, 1
        s_lshl_b32 s3, s29, 2
        v_mov_b32 v111, s3
        s_lshl_b32 s3, s19, 2
        v_writelane_b32 v111, s3, 1
        s_movk_i32 s3, {L_FLAG - L_START}
        v_writelane_b32 v111, s3, 2
        s_sub_u32 s3, 16, s30
        s_mul_i32 s3, s3, {sk}
        s_add_u32 s3, s3, 128
        s_mul_i32 s22, s3, s30
        s_add_u32 s4, s30, 1
        s_sub_u32 s3, s3, {sk}
        s_mul_i32 s23, s3, s4
        s_add_u32 s18, s18, 1
        ''')

    a('''s_cmp_lg_u32 s30, 0
    s_cbranch_scc1 K2_SETUP''')
    setup()
    a(f'''
    s_waitcnt lgkmcnt(0)
    s_barrier
    ds_read_b32 v56, v100 offset:{L_HIST}
    ds_read_b32 v57, v100 offset:{L_HIST + 4}
    ds_read_b32 v58, v100 offset:{L_HIST + 8}
    v_mad_u32_u24 v60, v1, 3, 1
    v_add_u32 v61, 1, v60
    v_add_u32 v62, 2, v60
    v_cmp_ge_u32 s[86:87], s29, v60
    v_cmp_ge_u32 s[88:89], s29, v61
    v_cmp_ge_u32 s[90:91], s29, v62
    s_waitcnt lgkmcnt(0)
    ''')
    for x in range(3):
        a(f'v_add_u32 v{56 + x}, 3, v{56 + x}')
    for x in range(3):
        a(f'v_and_b32 v{56 + x}, -4, v{56 + x}')
    for x in range(3):
        a(f'v_max_u32 v{56 + x}, 4, v{56 + x}')
    for x in range(3):
        a(f'v_cndmask_b32 v{56 + x}, 0, v{56 + x}, {sr(86 + 2 * x, 2)}')
    a('''v_add3_u32 v59, v56, v57, v58
    v_mov_b32 v96, v59''')
    scan64(a, 96)
    a(f'''
    v_add_u32 v96, {L_REC // 8}, v96
    v_sub_u32 v93, v96, v59
    v_readlane_b32 s3, v96, 63
    v_add_u32 v94, v93, v56
    v_add_u32 v95, v94, v57
    ds_write_b32 v100, v93 offset:{L_START}
    ds_write_b32 v100, v94 offset:{L_START + 4}
    ds_write_b32 v100, v95 offset:{L_START + 8}
    s_cmp_gt_u32 s3, {QCAP * 4 + L_REC // 8}
    s_cbranch_scc1 K2_NOSCAN
    v_lshrrev_b32 v93, 2, v93
    v_lshrrev_b32 v94, 2, v94
    v_lshrrev_b32 v95, 2, v95
    v_lshrrev_b32 v96, 2, v96
    s_mov_b64 exec, 1
    ds_write_b8 v93, v60 offset:{QOFF - 1}
    ''')
    for x in range(3):
        a(f'''s_mov_b64 exec, {sr(86 + 2 * x, 2)}
        ds_write_b8 v{94 + x}, v{60 + x} offset:{QOFF - 1}''')
    a('''s_mov_b64 exec, -1
    s_branch K2_NOSCAN
    K2_SETUP:
    s_waitcnt lgkmcnt(0)
    s_barrier''')
    setup()
    a(f'''
    K2_NOSCAN:
    s_waitcnt lgkmcnt(0)
    s_barrier
    ''')
    stamp(a, 4, SV)
    if warm == 1:
        touch()
    a(f'''ds_read_b32 v110, v110 offset:{L_START}
    ds_read_b32 v111, v111 offset:{L_START}''')

    def f_start(x):
        a(f'ds_read_b32 v{SQ + x}, v{HA + x} offset:{L_START}')
    for_records(f_start, 'K2_S1_DONE')
    a(f'''s_waitcnt lgkmcnt(0)
    v_readlane_b32 s17, v111, 0
    v_readlane_b32 s3, v111, 2
    v_lshrrev_b32 v110, 4, v110
    v_add_u32 v111, 15, v111
    v_lshrrev_b32 v111, 4, v111
    v_sub_u32 v111, v111, v110
    s_cmp_gt_u32 s17, {QCAP * 4 + L_REC // 8}
    s_cbranch_scc1 K2_FALLBACK
    s_cmp_lg_u32 s3, 0
    s_cbranch_scc1 K2_FALLBACK
    ''')

    def f_scatter(x):
        R = REC + 4 * x
        a(f'''v_add_u32 v{SQ + x}, v{SQ + x}, v{R + 3}
        v_lshlrev_b32 v{HA + x}, 3, v{SQ + x}
        v_add_u32 v{SQ + x}, v{SQ + x}, v{SQ + x}
        ds_write_b64 v{HA + x}, {vr(R, 2)}
        ds_write_b16 v{SQ + x}, v{R + 2} offset:{ZOFF}''')
    for_records(f_scatter, 'K2_S2_DONE')
    a(f'''
    v_mul_u32_u24 v108, s22, v111
    v_mul_u32_u24 v109, s23, v111
    v_lshrrev_b32 v108, 11, v108
    v_lshrrev_b32 v109, 11, v109
    v_sub_u32 v109, v109, v108
    v_add_u32 v108, v108, v110
    v_lshlrev_b32 v110, 7, v108
    v_lshlrev_b32 v108, 2, v108
    v_readlane_b32 s21, v109, 0
    v_readlane_b32 s23, v109, 1
    v_readlane_b32 s12, v110, 0
    v_readlane_b32 s13, v110, 1
    s_mov_b32 s52, 3
    s_mov_b32 s53, 3
    s_mov_b32 s56, 0
    s_mov_b32 s57, 0
    s_cmp_eq_u32 s21, 0
    s_cselect_b32 s12, s13, s12
    s_cselect_b32 s32, s36, s32
    s_cselect_b32 s33, s37, s33
    s_add_u32 s14, s12, 128
    s_cmp_eq_u32 s21, 1
    s_cselect_b32 s14, s13, s14
    s_sub_u32 s13, s13, 128
    v_add_u32 v{aR1}, s12, v{cQ8}
    v_add_u32 v{aR2}, s14, v{cQ8}
    v_add_u32 v{aS}, s13, v{cQ8}
    v_lshrrev_b32 v{aZ}, 2, v{aR1}
    v_add_u32 v{U}, v{aR1}, v{cGA}
    v_lshrrev_b32 v{U + 1}, 5, v{aR1}
    v_add_u32 v{U + 5}, v{aR2}, v{cGA}
    v_lshrrev_b32 v{U + 6}, 5, v{aR2}
    s_mul_i32 s58, s21, 11
    s_lshr_b32 s59, s58, 5
    s_lshr_b32 s58, s58, 4
    s_max_u32 s58, s58, 2
    s_max_u32 s59, s59, 2
    s_mov_b32 s31, s21
    s_waitcnt vmcnt({1 if warm else 0}) lgkmcnt(0)
    s_barrier
    ''')
    stamp(a, 5, SV)

    def gather(r):
        a(f'''v_lshl_add_u32 v{U + 7}, v{SR + r}, 8, v{cLM}
        buffer_load_dwordx4 {vr(D + 4 * r, 4)}, v{U + 7}, s[32:35], 0 offen''')

    for r in range(4):
        a(f'ds_read_u16 v{SR + r}, v{aR1} offset:{32 * r}')
    a(f'''ds_read_u16 v{GA}, v{U} offset:4
    ds_read_b32 v{U + 2}, v{U + 1} offset:{QOFF}
    ds_read_u8 v{U + 3}, v108 offset:{QOFF - 1}
    ds_read_b128 {vr(BWV, 4)}, v101 offset:{L_WRF}
    ds_read_b128 {vr(BWV + 4, 4)}, v101 offset:{L_WRF + 1024}
    ds_read_b128 {vr(BWS, 4)}, v101 offset:{L_WRF + 2048}
    ds_read_b128 {vr(BWS + 4, 4)}, v101 offset:{L_WRF + 3072}
    ds_read_b128 {vr(BWS + 8, 4)}, v101 offset:{L_WRF + 4096}
    ds_read_b128 {vr(BWS + 12, 4)}, v101 offset:{L_WRF + 5120}
    s_add_u32 s3, s21, s23
    s_cmp_eq_u32 s3, 0
    s_cselect_b32 s34, 0, s34
    ''')
    if OPT['prio']:
        a('s_setprio 3')
    a('s_waitcnt lgkmcnt(9)')
    for r in range(4):
        gather(r)
    a(f'''s_waitcnt lgkmcnt(6)
    v_add_u32 v{GA}, v{GA}, v{cQ8}
    ds_read_b64 {vr(A, 2)}, v{GA}
    ds_read_b32 v{QN}, v{U + 6} offset:{QOFF}
    ds_read_u16 v{GA}, v{U + 5} offset:4''')
    for r in range(4):
        a(f'''ds_read_b64 {vr(RH + 2 * r, 2)}, v{aR1} offset:{32 * r}
        ds_read_u16_d16_hi v{Z + r}, v{aZ} offset:{ZOFF + 8 * r}
        ds_read_u16 v{SR + r}, v{aR2} offset:{32 * r}''')
    a(f'''v_readfirstlane_b32 s15, v{U + 2}
    v_readlane_b32 s3, v{U + 3}, 0
    v_readlane_b32 s4, v{U + 3}, 1
    v_mov_b64 {vr(ACC, 2)}, 0
    v_mov_b64 {vr(ACC + 2, 2)}, 0
    v_mov_b64 {vr(ACC + 4, 2)}, 0
    v_mov_b64 {vr(ACC + 6, 2)}, 0
    s_cmp_eq_u32 s3, 0
    s_cselect_b32 s54, 1, 0
    s_cmp_eq_u32 s4, 0
    s_cselect_b32 s55, 1, 0
    s_cmp_eq_u32 s21, 0
    s_cbranch_scc1 K2_VDONE
    ''')

    def top(nm, bw, lg, isv):
        a(f's_waitcnt lgkmcnt({lg})')
        for x in range(nm):
            a(f'v_mfma_f32_16x16x16_bf16 {vr(W + 4 * x, 4)}, {vr(A, 2)}, {vr(bw + 2 * x, 2)}, 0')
        a(f'''s_mov_b32 s14, s15
        v_add_u32 v{GA}, v{GA}, v{cQ8}
        v_readfirstlane_b32 s15, v{QN}
        ds_read_b64 {vr(A, 2)}, v{GA}''')
        if isv:
            a(f'''v_mov_b32 v{aR1}, v{aR2}
            v_lshrrev_b32 v{aZ}, 2, v{aR2}
            s_cmp_eq_u32 s21, s31
            s_cbranch_scc1 K2_EVENT
            K2_EVRET:''')
        a(f'''v_add_u32 v{aR2}, 0x80, v{aR2}
        v_lshrrev_b32 v{U + 1}, 5, v{aR2}
        v_add_u32 v{U}, v{aR2}, v{cGA}
        ds_read_b32 v{QN}, v{U + 1} offset:{QOFF}
        ds_read_u16 v{GA}, v{U} offset:4''')

    def unpack(r):
        d = D + 4 * r
        if stream:
            a(f'''v_lshlrev_b64 {vr(U, 2)}, 16, {vr(d, 2)}
            v_lshlrev_b64 {vr(U + 2, 2)}, 16, {vr(d + 2, 2)}''')
        else:
            for x in range(4):
                a(f'v_lshlrev_b32 v{U + x}, 16, v{d + x}')
            for x in range(4):
                a(f'v_and_b32 v{d + x}, v{vMask}, v{d + x}')
        return [U, d, U + 1, d + 1, U + 2, d + 2, U + 3, d + 3]

    def fmac(acc, x, y):
        if (acc & 1) == (x & 1) == (y & 1):
            OPT['_bankconf'] = OPT.get('_bankconf', 0) + 1
        a(f'v_fmac_f32 v{acc}, v{x}, v{y}')

    def pk(acc, x, y, sx=None, sy=None):
        def sel(reg, b):
            return (reg, 0, 1) if b is None else (reg & ~1, reg & 1, reg & 1)
        x0, xl, xh = sel(x, sx)
        y0, yl, yh = sel(y, sy)
        a(f'v_pk_fma_f32 {vr(acc, 2)}, {vr(x0, 2)}, {vr(y0, 2)}, {vr(acc, 2)} '
          f'op_sel:[{xl},{yl},0] op_sel_hi:[{xh},{yh},1]')

    vacc = [ACC + 0, ACC + 2, ACC + 1, ACC + 3, ACC + 4, ACC + 5]
    sacc = [ACC + 1, ACC + 3, ACC + 0, ACC + 2, ACC + 5, ACC + 7, ACC + 4, ACC + 6]

    def red_v():
        m = vacc
        for k in range(3):
            a(f'v_permlane32_swap_b32 v{m[2 * k]}, v{m[2 * k + 1]}')
        a(f'''v_add_f32 v{m[4]}, v{m[4]}, v{m[5]}
        v_add_f32 v{m[0]}, v{m[0]}, v{m[1]}
        v_add_f32 v{m[2]}, v{m[2]}, v{m[3]}
        v_mov_b32 v{m[5]}, v{m[4]}
        v_permlane16_swap_b32 v{m[0]}, v{m[2]}
        v_permlane16_swap_b32 v{m[4]}, v{m[5]}
        v_add_f32 v{m[0]}, v{m[0]}, v{m[2]}
        v_add_f32 v{m[4]}, v{m[4]}, v{m[5]}''')
        return m[0], m[4]

    def red_s():
        m = sacc
        for pa in range(2):
            a(f'v_permlane32_swap_b32 v{m[pa]}, v{m[4 + pa]}')
            a(f'v_permlane32_swap_b32 v{m[2 + pa]}, v{m[6 + pa]}')
        for pa in range(2):
            a(f'v_add_f32 v{m[pa]}, v{m[pa]}, v{m[4 + pa]}')
            a(f'v_add_f32 v{m[2 + pa]}, v{m[2 + pa]}, v{m[6 + pa]}')
        for pa in range(2):
            a(f'v_permlane16_swap_b32 v{m[pa]}, v{m[2 + pa]}')
        for pa in range(2):
            a(f'v_add_f32 v{m[pa]}, v{m[pa]}, v{m[2 + pa]}')
        return m[0], m[1]

    def write_v(x, y, node1):
        a(f'''s_lshl_b32 s3, {node1}, 8
        v_cvt_pk_bf16_f32 v{x}, v{x}, v{y}
        v_add_u32 v{vX}, s3, v{vO1}
        v_add_u32 v{y}, s3, v{vO2}
        ds_write_b16 v{vX}, v{x}
        ds_write_b16_d16_hi v{y}, v{x}''')

    def write_s(x, y, node1, skip):
        a(f'''s_sub_u32 s3, {node1}, s18
        s_cmp_ge_u32 s3, s20
        s_cbranch_scc1 {skip}
        s_lshl_b32 s3, s3, 10
        v_cvt_pk_bf16_f32 v{x}, v{x}, v{y}
        v_add_u32 v{vX}, s3, v{vOS}
        ds_write_b32 v{vX}, v{x}''')

    deferred = []

    def flush(kind, r):
        L = f'K2_{kind}F{r}'
        cont, fnode, freg = ('s54', 's56', FV) if kind == 'V' else ('s55', 's57', FS)
        a(f'''s_bfe_u32 s5, s14, {(8 << 16) | (8 * r):#x}
        s_cbranch_scc0 {L}''')
        x, y = red_v() if kind == 'V' else red_s()
        a(f'''s_cmp_lg_u32 {cont}, 0
        s_cbranch_scc1 {L}_c''')
        deferred.append(f'''{L}_c:
        v_mov_b32 v{freg}, v{x}
        v_mov_b32 v{freg + 1}, v{y}
        s_mov_b32 {fnode}, s5
        s_mov_b32 {cont}, 0
        s_branch {L}_z''')
        if kind == 'V':
            write_v(x, y, 's5')
        else:
            write_s(x, y, 's5', f'{L}_z')
        a(f'{L}_z:')
        for xx in range(3 if kind == 'V' else 4):
            a(f'v_mov_b64 {vr(ACC + 2 * xx, 2)}, 0')
        a(f'{L}:')

    def tail(kind):
        cont, stat = ('s54', 's52') if kind == 'V' else ('s55', 's53')
        L = f'K2_{kind}T'
        a(f'''s_mov_b32 {stat}, 0
        s_lshr_b32 s5, s14, 24
        s_cbranch_scc1 {L}''')
        x, y = red_v() if kind == 'V' else red_s()
        a(f'''s_add_u32 {stat}, {cont}, 1
        s_lshl_b32 s3, s30, 9
        s_add_u32 s3, s3, {0 if kind == 'V' else 8192}
        v_lshl_add_u32 v{vX}, v1, 2, s3
        ds_write_b32 v{vX}, v{x} offset:{L_CARRY}
        ds_write_b32 v{vX}, v{y} offset:{L_CARRY + 256}''')
        if kind == 'V':
            for xx in range(3):
                a(f'v_mov_b64 {vr(ACC + 2 * xx, 2)}, 0')
        a(f'{L}:')

    a('K2_VLOOP:')
    top(4, BWV, 12, True)
    for r in range(4):
        a('s_waitcnt vmcnt(3) lgkmcnt(12)')
        f = unpack(r)
        w = lambda x: W + 4 * x + r
        h = RH + 2 * r
        ta, tb = U + 4, U + 5
        a(f'''v_mul_f32 v{tb}, v{f[7]}, v{w(3)}
        v_mul_f32 v{ta}, v{f[6]}, v{w(2)}''')
        fmac(vacc[5], f[5], w(1))
        fmac(vacc[4], f[4], w(0))
        pk(ACC + 2, f[1], w(1), sy=1)
        gather(r)
        pk(ACC, f[0], w(0), sy=1)
        pk(ACC + 4, ta, Z + r, sy=1)
        pk(ACC + 2, tb, h, sx=1)
        pk(ACC, ta, h, sx=1)
        a(f'''ds_read_b64 {vr(h, 2)}, v{aR1} offset:{32 * r}
        ds_read_u16_d16_hi v{Z + r}, v{aZ} offset:{ZOFF + 8 * r}
        ds_read_u16 v{SR + r}, v{aR2} offset:{32 * r}''')
        flush('V', r)
    a('''s_sub_u32 s21, s21, 1
    s_cmp_lg_u32 s21, 0
    s_cbranch_scc1 K2_VLOOP''')
    tail('V')
    ev = f'''K2_EVENT:
    s_cmp_gt_u32 s21, s58
    s_cselect_b32 s31, s58, s59
    s_cbranch_scc1 K2_EVRET
    {'s_setprio 2' if OPT['prio'] else ''}
    s_cmp_gt_u32 s21, s59
    s_cbranch_scc1 K2_EVRET
    {'s_setprio 1' if OPT['prio'] else ''}
    s_mov_b32 s31, 2
    s_cmp_gt_u32 s21, 2
    s_cbranch_scc1 K2_EVRET
    s_mov_b32 s31, 1
    s_cmp_eq_u32 s21, 2
    s_cbranch_scc0 K2_EV1
    v_mov_b32 v{aR2}, v{aS}
    s_branch K2_EVRET
    K2_EV1:
    s_mov_b32 s32, s36
    s_mov_b32 s33, s37
    s_cmp_eq_u32 s23, 0
    s_cselect_b32 s34, 0, s34
    s_branch K2_EVRET'''
    deferred.append(ev)
    a('''K2_VDONE:
    s_cmp_eq_u32 s23, 0
    s_cbranch_scc1 K2_STREAM_DONE''')
    if OPT['prio']:
        a('s_setprio 0')
    a('K2_SLOOP:')
    top(8, BWS, 4, False)
    a('''s_sub_u32 s23, s23, 1
    s_cmp_eq_u32 s23, 0
    s_cselect_b32 s34, 0, s34''')
    for r in range(4):
        a('s_waitcnt vmcnt(3) lgkmcnt(6)')
        f = unpack(r)
        for t in (1, 3, 5, 7):
            fmac(sacc[t], f[t], W + 4 * t + r)
        gather(r)
        for t in (0, 2, 4, 6):
            fmac(sacc[t], f[t], W + 4 * t + r)
        a(f'ds_read_u16 v{SR + r}, v{aR2} offset:{32 * r}')
        flush('S', r)
    a('''s_cmp_lg_u32 s23, 0
    s_cbranch_scc1 K2_SLOOP''')
    tail('S')

    OBR = 24
    a(f'''
    K2_STREAM_DONE:
    s_setprio 0
    s_lshl_b32 s3, s30, 2
    v_mov_b32 v40, s3
    v_mov_b32 v41, s52
    v_mov_b32 v42, s53
    ds_write_b32 v40, v41 offset:{L_ST}
    ds_write_b32 v40, v42 offset:{L_ST + 64}
    s_mov_b32 s50, {N * 1024}
    s_mov_b32 s51, 0x00020000
    s_add_u32 s4, s28, s3
    s_lshl_b32 s4, s4, 10
    s_lshl_b32 s5, s26, 6
    s_add_u32 s4, s4, s5
    s_add_u32 s5, s28, s18
    s_add_u32 s5, s5, s30
    s_sub_u32 s5, s5, 1
    s_lshl_b32 s5, s5, 10
    s_lshl_b32 s6, s20, 2
    v_add_u32 v44, s3, v2
    v_and_b32 v45, 3, v1
    v_bfe_u32 v49, v1, 2, 2
    v_lshlrev_b32 v45, 4, v45
    v_lshl_add_u32 v46, v2, 10, v45
    v_lshl_add_u32 v46, v49, 8, v46
    v_add_u32 v46, s4, v46
    v_lshl_add_u32 v47, v2, 6, v45
    v_add_u32 v47, s5, v47
    v_cmp_eq_u32 vcc, 0, v49
    v_mov_b32 v50, 0x10000
    v_mov_b32 v51, 0x4000
    v_mov_b32 v52, s29
    v_mov_b32 v53, s6
    v_cndmask_b32 v46, v46, v47, vcc
    v_cndmask_b32 v50, v50, v51, vcc
    v_cndmask_b32 v52, v52, v53, vcc
    v_sub_u32 v52, v52, v44
    v_add_u32 v47, v46, v50
    v_add_u32 v48, v47, v50
    v_cmp_lt_i32 s[80:81], 0, v52
    v_cmp_lt_i32 s[82:83], 64, v52
    v_cmp_lt_i32 vcc, 0x80, v52
    s_mov_b64 s[84:85], vcc
    v_lshlrev_b32 v43, 4, v0
    v_add_u32 v43, {L_OB}, v43
    ''')
    for it in range(3):
        a(f'''s_mov_b64 exec, {sr(80 + 2 * it, 2)}
        buffer_load_dwordx4 {vr(SVR[it], 4)}, v{46 + it}, s[44:47], 0 offen {OPT['k2ld']}''')
    a('s_mov_b64 exec, -1')
    stamp(a, 6, SV)
    a('''s_waitcnt lgkmcnt(0)
    s_barrier''')
    for kind in 'VS':
        fnode, freg, so, co = ('s56', FV, 0, 0) if kind == 'V' else ('s57', FS, 64, 8192)
        L = f'K2_FIN{kind}'
        a(f'''
        s_cmp_eq_u32 {fnode}, 0
        s_cbranch_scc1 {L}_done
        s_mov_b32 s6, s30
        {L}_loop:
        s_cmp_eq_u32 s6, 0
        s_cbranch_scc1 {L}_wr
        s_sub_u32 s6, s6, 1
        s_lshl_b32 s3, s6, 2
        v_mov_b32 v40, s3
        s_lshl_b32 s3, s6, 9
        s_add_u32 s3, s3, {co}
        v_lshl_add_u32 v41, v1, 2, s3
        ds_read_b32 v40, v40 offset:{L_ST + so}
        ds_read_b32 v42, v41 offset:{L_CARRY}
        ds_read_b32 v41, v41 offset:{L_CARRY + 256}
        s_waitcnt lgkmcnt(0)
        v_readfirstlane_b32 s7, v40
        s_cmp_eq_u32 s7, 3
        s_cbranch_scc1 {L}_loop
        s_cmp_eq_u32 s7, 0
        s_cbranch_scc1 {L}_wr
        v_add_f32 v{freg}, v{freg}, v42
        v_add_f32 v{freg + 1}, v{freg + 1}, v41
        s_cmp_eq_u32 s7, 2
        s_cbranch_scc1 {L}_loop
        {L}_wr:''')
        if kind == 'V':
            write_v(freg, freg + 1, fnode)
        else:
            write_s(freg, freg + 1, fnode, f'{L}_done')
        a(f'{L}_done:')
    a(f'''
    s_waitcnt lgkmcnt(0)
    s_barrier
    ds_read_b128 {vr(OBR, 4)}, v43
    ds_read_b128 {vr(OBR + 4, 4)}, v43 offset:16384
    ds_read_b128 {vr(OBR + 8, 4)}, v43 offset:32768
    ''')
    stamp(a, 7, SV)
    for it in range(3):
        if it == 2:
            a('''s_cmp_ge_u32 s30, 8
            s_cbranch_scc1 K2_EPI_DONE''')
        a(f's_waitcnt vmcnt(2) lgkmcnt({2 - it})')
        for x in range(4):
            s, o = SVR[it] + x, OBR + it * 4 + x
            a(f'''v_lshlrev_b32 v{U}, 16, v{s}
            v_and_b32 v{U + 1}, v{vMask}, v{s}
            v_lshlrev_b32 v{U + 2}, 16, v{o}
            v_and_b32 v{U + 3}, v{vMask}, v{o}
            v_add_f32 v{U}, v{U}, v{U + 2}
            v_add_f32 v{U + 1}, v{U + 1}, v{U + 3}
            v_cvt_pk_bf16_f32 v{s}, v{U}, v{U + 1}''')
        a(f'''s_mov_b64 exec, {sr(80 + 2 * it, 2)}
        buffer_store_dwordx4 {vr(SVR[it], 4)}, v{46 + it}, s[48:51], 0 offen {OPT['out_store']}
        s_mov_b64 exec, -1''')
    a('K2_EPI_DONE:')
    stamp_out(a, SV, 's30', 1, 16)
    a('s_endpgm')
    for d in deferred:
        a(d)
    a('''K2_FALLBACK:
    K2_END:
    s_endpgm''')
    return a


def kernel_text(name, a):
    n = a.fix_hazards()
    nv, ns = a.max_regs()
    nv4 = (nv + 3) // 4 * 4
    body = f'.globl {name}\n.p2align 8\n.type {name},@function\n{name}:\n' + a.text()
    desc = f'''.p2align 6
.amdhsa_kernel {name}
  .amdhsa_next_free_vgpr {nv4}
  .amdhsa_next_free_sgpr {max(ns, 16)}
  .amdhsa_accum_offset {nv4}
  .amdhsa_group_segment_fixed_size 0
  .amdhsa_kernarg_size 88
  .amdhsa_user_sgpr_count 2
  .amdhsa_user_sgpr_kernarg_segment_ptr 1
  .amdhsa_system_sgpr_workgroup_id_x 1
  .amdhsa_float_denorm_mode_32 3
.end_amdhsa_kernel
'''
    print(f'{name}: vgpr {nv} sgpr {ns} nops inserted {n} instrs {sum(1 for k, _ in a.items if k == "i")}'
          f' bankconf {OPT.get("_bankconf", 0)}', file=sys.stderr)
    return body, desc


def main(out):
    hdr = open('cdna_kernels/' + NAME + '.s.ref').read().split('; Override launch')[0]
    launches = [
        f'; @launch kernel=painn_pre_kernel grid=({NK1},1,1) block=(512,1,1) lds={K1_LDS}',
        f'; @launch kernel=painn_main_kernel grid=(256,1,1) block=(1024,1,1) lds={L_TOTAL}',
    ]
    b1, d1 = kernel_text('painn_pre_kernel', gen_k1())
    b2, d2 = kernel_text('painn_main_kernel', gen_k2())
    txt = hdr + '\n'.join(launches) + '\n.amdgcn_target "amdgcn-amd-amdhsa--gfx950"\n.text\n' + b1 + b2
    txt += '.section .rodata,"a"\n' + d1 + d2
    open(out, 'w').write(txt)


if __name__ == '__main__':
    for kv in sys.argv[2:]:
        k, v = kv.split('=', 1)
        OPT[k] = int(v) if v.lstrip('-').isdigit() else v
    main(sys.argv[1] if len(sys.argv) > 1 else 'v4.s')
```

```python
import sys
from asmlib import Asm, vr, sr

N = 10000
E = 320000
NAME = 'standalone__molecular_angular_painn__graph'

TAB = N * 256
TABS_BASE = 4 * TAB
MISC_BASE = 5 * TAB
GT_OFF = 0
WRF_OFF = 65536
CNT_OFF = 77824
RECS_OFF = 98304
NCH = 64
CHUNK = 5120
CELL = 1536
OVF_OFF = RECS_OFF + 64 * NCH * CELL
MISC_SIZE = OVF_OFF + NCH * CHUNK * 12
BN = 157
SN = 40
DMIN = 0x38D2
GTOP = 0x40A1
NFAST = 1186

NG = 157
R_GEMM = NCH
R_GT = NCH + NG
R_WRF = R_GT + 8
NK1 = R_WRF + 1

G_FR1 = 0
G_FR2 = 32768
G_H = 131072
G_S = 147456
K1_LDS = 163840
B_POS = 0
B_HIST = 60416
B_STG = 61440
BCELL = 1552

L_G = 0
L_HIST = 38912
L_START = 39680
L_FLAG = 40448
L_WRF = 40960
L_OB = 47104
L_ZA = 88064
L_REC = 113280
L_TOTAL = 163840
RCAP = 6304 - 66

OPT = dict(st='sc1', out_store='nt', stream=1, prio=1, round_phi=0, k1ld='', k2ld='', warm=2, d16=0, w2e=3, vmain=1, skew=2, eld='nt')
DBG_BASE = 32 << 20
MASK = '0xffff0000'


def stamp(a, idx, vreg, real=False):
    if not OPT.get('stamps'):
        return
    a(f'''{'s_memrealtime' if real else 's_memtime'} s[92:93]
    s_waitcnt lgkmcnt(0)
    v_writelane_b32 v{vreg}, s92, {idx}''')


def stamp_out(a, vreg, wave_s, kidx, nw):
    if not OPT.get('stamps'):
        return
    a('s_waitcnt vmcnt(0)')
    stamp(a, 8, vreg)
    stamp(a, 9, vreg, True)
    a(f'''s_mov_b64 exec, -1
    s_add_u32 s96, s24, {DBG_BASE + kidx * (4 << 20)}
    s_addc_u32 s97, s25, 0
    s_mov_b32 s98, {4 << 20}
    s_mov_b32 s99, 0x00020000
    s_mul_i32 s94, s2, {nw}
    s_add_u32 s94, s94, {wave_s}
    s_lshl_b32 s94, s94, 8
    v_and_b32 v1, 63, v0
    v_lshlrev_b32 v1, 2, v1
    buffer_store_dword v{vreg}, v1, s[96:99], s94 offen''')


def srd(a, d, lo, hi, size):
    a(f'''s_mov_b32 s{d}, {lo}
    s_mov_b32 s{d+1}, {hi}
    s_mov_b32 s{d+2}, {size}
    s_mov_b32 s{d+3}, 0x00020000''')


def srd_ws(a, d, off, size):
    a(f'''s_add_u32 s{d}, s24, {off}
    s_addc_u32 s{d+1}, s25, 0
    s_mov_b32 s{d+2}, {size}
    s_mov_b32 s{d+3}, 0x00020000''')


def bf16_round_pair(a, x, y, tmp):
    a(f'''v_cvt_pk_bf16_f32 v{tmp}, v{x}, v{y}
    v_lshlrev_b32 v{x}, 16, v{tmp}
    v_and_b32 v{y}, {MASK}, v{tmp}''')


def bf16_round1(a, x):
    a(f'''v_cvt_pk_bf16_f32 v{x}, v{x}, v{x}
    v_and_b32 v{x}, {MASK}, v{x}''')


def scan64(a, v):
    for sh in (1, 2, 4, 8):
        a(f'v_add_u32_dpp v{v}, v{v}, v{v} row_shr:{sh} row_mask:0xf bank_mask:0xf bound_ctrl:0')
    a(f'v_add_u32_dpp v{v}, v{v}, v{v} row_bcast:15 row_mask:0xa bank_mask:0xf')
    a(f'v_add_u32_dpp v{v}, v{v}, v{v} row_bcast:31 row_mask:0xc bank_mask:0xf')


def gen_k1():
    a = Asm()
    st = OPT['st']
    ld = OPT['k1ld']
    eld = OPT['eld']
    SV = 127
    a(f'''
    s_cmp_ge_u32 s2, {NK1}
    s_cbranch_scc1 K1_END
    s_load_dwordx16 s[8:23], s[0:1], 0
    s_load_dwordx2 s[24:25], s[0:1], 80
    v_lshrrev_b32 v4, 6, v0
    v_and_b32 v1, 63, v0
    v_readfirstlane_b32 s26, v4
    v_lshrrev_b32 v2, 4, v1
    v_and_b32 v3, 15, v1
    s_mov_b32 s54, 0x05040100
    s_mov_b32 s55, 0x07060302
    s_cmp_ge_u32 s2, {R_GT}
    s_cbranch_scc1 K1_MISC
    s_cmp_lt_u32 s2, {R_GEMM}
    s_cbranch_scc1 K1_BIN
    ''')
    SF = 16
    W1R, PO1, AC1 = 32, 48, 64
    W2R, PO2 = 32, 80
    FB = 80
    AC = 32
    TM = 64
    VV = 112
    VE = 3
    a(f'''
    s_and_b32 s27, s26, 3
    s_bfe_u32 s28, s26, 0x10002
    s_lshr_b32 s58, s26, 3
    s_sub_u32 s29, s2, {R_GEMM}
    s_lshl_b32 s29, s29, 2
    s_add_u32 s29, s29, s27
    s_lshl_b32 s30, s29, 4
    v_lshlrev_b32 v6, 4, v3
    v_lshl_add_u32 v9, v2, 2, s30
    s_sub_u32 s3, s2, {R_GEMM}
    s_lshl_b32 s3, s3, 4
    s_add_u32 s3, s3, s26
    s_lshl_b32 s3, s3, 12
    v_lshl_add_u32 v10, v2, 10, v6
    v_add_u32 v10, s3, v10
    v_lshrrev_b32 v11, 3, v3
    v_mul_u32_u24 v11, 0x1010, v11
    v_lshl_add_u32 v11, v2, 8, v11
    v_and_b32 v12, 7, v3
    v_lshl_add_u32 v11, v12, 5, v11
    s_mov_b32 s34, {N * 1024}
    s_mov_b32 s35, 0x00020000
    s_cmp_lg_u32 s58, 0
    s_cbranch_scc1 K1_HELP
    s_lshl_b32 s31, s28, 3
    v_add_u32 v5, s31, v2
    v_xor_b32 v7, v5, v3
    v_add_u32 v5, s30, v5
    v_lshlrev_b32 v5, 10, v5
    v_lshl_add_u32 v5, v7, 4, v5
    v_xor_b32 v8, 64, v5
    v_add_u32 v8, 0x1000, v8
    s_lshl_b32 s56, s27, 12
    s_lshl_b32 s3, s28, 11
    s_add_u32 s56, s56, s3
    s_add_u32 s56, s56, {G_S}
    s_add_u32 s57, s56, 1024
    v_lshl_add_u32 v7, v2, 11, v6
    s_lshr_b32 s48, s26, 1
    s_lshl_b32 s48, s48, 13
    s_and_b32 s3, s26, 1
    s_lshl_b32 s4, s3, 10
    s_add_u32 s49, s48, s4
    s_lshl_b32 s3, s3, 3
    s_add_u32 s48, s48, s3
    v_add_u32 v12, s48, v11
    s_mov_b32 s38, 32768
    s_mov_b32 s39, 0x00020000
    s_mov_b32 m0, s56
    s_waitcnt lgkmcnt(0)
    ''')
    stamp(a, 0, SV, True)
    stamp(a, 1, SV)
    a('''s_mov_b32 s32, s8
    s_mov_b32 s33, s9
    s_mov_b32 s36, s18
    s_mov_b32 s37, s19''')
    for ii in range(4):
        a(f'buffer_load_dwordx4 {vr(W1R + 4 * ii, 4)}, v7, s[36:39], s49 offen offset:{ii * 256}')
    a(f'''buffer_load_dwordx4 v5, s[32:35], 0 offen {ld} lds
    s_mov_b32 m0, s57
    s_nop 0
    buffer_load_dwordx4 v8, s[32:35], 0 offen {ld} lds''')
    def vload():
        for kk in range(3):
            a(f'buffer_load_dwordx4 {vr(VV + 4 * kk, 4)}, v10, s[32:35], 0 offen offset:{(1 + kk) * 256} {ld}')

    def half_unit(raw, po, addr, tmp):
        a(f'v_xor_b32 v{tmp}, 16, v{addr}')
        for t in range(8):
            c, pa = divmod(t, 2)
            sel = 's55' if pa else 's54'
            a(f'''v_perm_b32 v{po + 2 * t}, v{raw + 4 + c}, v{raw + c}, {sel}
            v_perm_b32 v{po + 2 * t + 1}, v{raw + 12 + c}, v{raw + 8 + c}, {sel}
            ds_write_b64 v{addr if t < 4 else tmp}, {vr(po + 2 * t, 2)} offset:{(t & 3) * 1024}''')

    def common_addr():
        a(f'''
        v_lshlrev_b32 v11, 4, v1
        s_mul_i32 s3, s28, 0x1010
        v_xor_b32 v4, s3, v11
        s_lshl_b32 s3, s27, 12
        s_add_u32 s3, s3, {G_H}
        v_add_u32 v5, s3, v11
        v_lshrrev_b32 v13, 3, v3
        s_mov_b32 s3, {TAB}
        v_mul_lo_u32 v8, v13, s3
        v_and_b32 v12, 7, v3
        v_lshlrev_b32 v12, 4, v12
        v_lshl_add_u32 v12, v9, 8, v12
        s_mul_i32 s3, s28, {2 * TAB}
        s_lshl_b32 s4, s58, 7
        s_add_u32 s3, s3, s4
        v_add3_u32 v8, v8, v12, s3
        s_lshl_b32 s3, s28, 7
        s_add_u32 s3, s3, {TABS_BASE}
        v_lshlrev_b32 v13, 8, v13
        v_add3_u32 v9, v12, v13, s3
        s_lshl_b32 s3, s58, 11
        s_add_u32 s4, s3, {G_FR2}
        v_add_u32 v12, s4, v4
        v_add_u32 v13, 0xc000, v12
        ''')
        srd_ws(a, 44, 0, 5 * TAB)

    vm_ = OPT['vmain']
    if vm_ == 0:
        vload()
    a(f'''
    s_lshl_b32 s3, s27, 12
    s_add_u32 s4, s3, {G_S}
    v_xor_b32 v124, v2, v3
    v_lshlrev_b32 v124, 4, v124
    v_lshl_add_u32 v124, v3, 8, v124
    v_add_u32 v124, s4, v124
    v_xor_b32 v125, 64, v124
    v_xor_b32 v126, 0x80, v124
    v_xor_b32 v15, 0xc0, v124
    s_add_u32 s3, s3, {G_H}
    s_lshl_b32 s4, s28, 11
    s_add_u32 s3, s3, s4
    v_lshl_add_u32 v7, v2, 9, v6
    v_add_u32 v7, s3, v7
    v_mov_b32 v14, v12
    ''')
    common_addr()
    a(f's_waitcnt vmcnt({2 + (VE if vm_ == 0 else 0)})')
    stamp(a, 2, SV)
    half_unit(W1R, PO1, 14, 11)
    a(f'''s_waitcnt vmcnt({VE if vm_ == 0 else 0}) lgkmcnt(0)
    s_barrier''')
    for u, ad in enumerate((124, 125, 126, 15)):
        a(f'ds_read_b128 {vr(SF + 4 * u, 4)}, v{ad}')
    order = [(u, tt) for u in range(4) for tt in range(4)]
    for n, (u, tt) in enumerate(order[:8]):
        a(f'ds_read_b128 {vr(FB + 4 * n, 4)}, v4 offset:{(u * 8 + tt) * 1024}')
    for n, (u, tt) in enumerate(order):
        a(f's_waitcnt lgkmcnt({min(7, 15 - n)})')
        d = AC1 + 4 * tt
        c = '0' if u == 0 else vr(d, 4)
        a(f'v_mfma_f32_16x16x32_bf16 {vr(d, 4)}, {vr(FB + 4 * (n & 7), 4)}, {vr(SF + 4 * u, 4)}, {c}')
        if n + 8 < 16:
            u2, t2 = order[n + 8]
            a(f'ds_read_b128 {vr(FB + 4 * (n & 7), 4)}, v4 offset:{(u2 * 8 + t2) * 1024}')
    stamp(a, 3, SV)
    if vm_ == 1:
        vload()
    for r in range(4):
        for p in range(2):
            xe, xo = AC1 + 4 * (2 * p) + r, AC1 + 4 * (2 * p + 1) + r
            t1, t2 = PO1 + 1 + 2 * p, PO1 + 2 + 2 * p
            bf16_round_pair(a, xe, xo, PO1)
            a(f'''v_mul_f32 v{t1}, 0xbfb8aa3b, v{xe}
            v_mul_f32 v{t2}, 0xbfb8aa3b, v{xo}
            v_exp_f32 v{t1}, v{t1}
            v_exp_f32 v{t2}, v{t2}
            v_add_f32 v{t1}, 1.0, v{t1}
            v_add_f32 v{t2}, 1.0, v{t2}
            v_rcp_f32 v{t1}, v{t1}
            v_rcp_f32 v{t2}, v{t2}
            v_mul_f32 v{t1}, v{t1}, v{xe}
            v_mul_f32 v{t2}, v{t2}, v{xo}
            v_cvt_pk_bf16_f32 v{W1R + 2 * r + p}, v{t1}, v{t2}''')
        if r & 1:
            a(f'ds_write_b128 v7, {vr(W1R + 2 * (r - 1), 4)} offset:{(r >> 1) * 256}')
    a('s_branch K1_G2')
    a(f'''K1_HELP:
    v_mul_u32_u24 v14, 6144, v2
    v_add_u32 v14, v14, v6
    s_mov_b32 s42, 98304
    s_mov_b32 s43, 0x00020000
    s_sub_u32 s7, s26, 8
    ''')
    for x in range(3):
        a(f'''s_mul_i32 s3, s7, 3
        s_add_u32 s3, s3, {x}
        s_lshr_b32 s4, s3, 1
        s_and_b32 s3, s3, 1
        s_mul_i32 s5, s4, 43
        s_lshr_b32 s5, s5, 7
        s_mul_i32 s6, s5, 3
        s_sub_u32 s6, s4, s6
        s_mul_i32 s5, s5, 24576
        s_lshl_b32 s6, s6, 8
        s_add_u32 s5, s5, s6
        s_mul_i32 s6, s3, 3072
        s_add_u32 s{50 + x}, s5, s6
        s_lshl_b32 s4, s4, 13
        s_lshl_b32 s3, s3, 3
        s_add_u32 s4, s4, s3
        s_add_u32 s4, s4, {G_FR2}
        v_add_u32 v{124 + x}, s4, v11''')
    a('s_waitcnt lgkmcnt(0)')
    stamp(a, 0, SV, True)
    stamp(a, 1, SV)
    a('''s_mov_b32 s32, s8
    s_mov_b32 s33, s9
    s_mov_b32 s40, s20
    s_mov_b32 s41, s21''')
    def w2load(x):
        for ii in range(4):
            a(f'buffer_load_dwordx4 {vr(W2R + 16 * x + 4 * ii, 4)}, v14, s[40:43], s{50 + x} offen offset:{ii * 768}')
    W2E = OPT['w2e']
    if W2E < 3:
        a("""s_sub_u32 s3, s2, 64
        s_lshr_b32 s3, s3, 3
        s_lshl_b32 s3, s3, 3
        s_add_u32 s3, s3, s7
        s_lshl_b32 s3, s3, 10
        v_lshlrev_b32 v15, 7, v1
        s_mov_b64 exec, 0xff
        buffer_load_dword v7, v15, s[40:43], s3 offen
        s_mov_b64 exec, -1""")
    for x in range(W2E):
        w2load(x)
    common_addr()
    stamp(a, 2, SV)
    a('s_barrier')
    for x in range(W2E, 3):
        w2load(x)
    VH = 3
    vload()
    for x in range(3):
        a(f's_waitcnt vmcnt({8 - 4 * x + VH})')
        half_unit(W2R + 16 * x, PO2 + 16 * (x & 1), 124 + x, 15)
    stamp(a, 3, SV)
    a(f'''K1_G2:
    v_lshlrev_b32 v10, 4, v0
    v_add_u32 v14, {G_S}, v10
    s_lshl_b32 s3, s27, 12
    s_lshl_b32 s4, s28, 7
    s_add_u32 s3, s3, s4
    s_lshl_b32 s4, s58, 2
    s_add_u32 s3, s3, s4
    v_lshlrev_b32 v7, 3, v3
    v_lshl_add_u32 v7, v2, 10, v7
    v_add_u32 v7, s3, v7
    v_add_u32 v15, {G_S}, v7
    s_cmp_ge_u32 s29, 625
    s_cselect_b32 s46, 0, s46
    s_waitcnt lgkmcnt(0)
    s_barrier
    ''')
    stamp(a, 4, SV)
    for u in range(4):
        a(f'ds_read_b128 {vr(SF + 4 * u, 4)}, v5 offset:{u * 1024}')

    def encode4(fields, out):
        if not OPT['stream']:
            for x in range(2):
                a(f'v_cvt_pk_bf16_f32 v{out + x}, v{fields[2 * x]}, v{fields[2 * x + 1]}')
            return
        for f in fields:
            a(f'v_add_u32 v{f}, 0x8000, v{f}')
        for x in range(1, 4):
            a(f'v_sub_u32_sdwa v{fields[x]}, v{fields[x]}, v{fields[x - 1]} dst_sel:DWORD dst_unused:UNUSED_PAD '
              f'src0_sel:DWORD src1_sel:WORD_1')
        for x in range(2):
            a(f'v_perm_b32 v{out + x}, v{fields[2 * x + 1]}, v{fields[2 * x]}, s55')

    def gemm2(items):
        def rd(n):
            u, ty, tt, d = items[n]
            a(f'ds_read_b128 {vr(FB + 4 * (n & 7), 4)}, v{12 if u < 2 else 13} '
              f'offset:{(((u & 1) * 3 + ty) * 8 + tt) * 1024}')
        for n in range(8):
            rd(n)
        for n, (u, ty, tt, d) in enumerate(items):
            a(f's_waitcnt lgkmcnt({min(7, len(items) - 1 - n)})')
            c = '0' if u == 0 else vr(d, 4)
            a(f'v_mfma_f32_16x16x32_bf16 {vr(d, 4)}, {vr(SF + 4 * u, 4)}, {vr(FB + 4 * (n & 7), 4)}, {c}')
            if n + 8 < len(items):
                rd(n + 8)

    def vwrite():
        a(f"""s_waitcnt vmcnt(0)
        ds_write_b128 v10, {vr(VV, 4)}
        ds_write_b128 v10, {vr(VV + 4, 4)} offset:16384
        ds_write_b128 v14, {vr(VV + 8, 4)}""")

    a("""s_cmp_lg_u32 s58, 0
    s_cbranch_scc1 K1_G2V""")
    if vm_ == 0:
        vwrite()
    gemm2([(u, 0, tt, AC + 16 + 4 * tt) for u in range(4) for tt in range(4)])
    a('K1_G2V:')
    gemm2([(u, ty, tt, AC + ((ty - 1) * 2 + tt) * 4) for u in range(4) for ty in (1, 2) for tt in range(2)])
    if vm_ == 0:
        a("""s_cmp_eq_u32 s58, 0
        s_cbranch_scc1 K1_B3""")
    vwrite()
    a("""K1_B3:
    s_waitcnt lgkmcnt(0)""")
    stamp(a, 5, SV)
    a('s_barrier')
    for r in range(4):
        a(f"""ds_read2st64_b32 {vr(VV + 4 * r, 2)}, v7 offset0:{r} offset1:{64 + r}
        ds_read_b32 v{VV + 4 * r + 2}, v15 offset:{r * 256}""")
    stamp(a, 6, SV)
    a("""s_cmp_lg_u32 s58, 0
    s_cbranch_scc1 K1_EPIV""")
    for rp in range(2):
        o = TM + rp * 8
        for h in range(2):
            f = [AC + 16 + t * 4 + 2 * rp + h for t in range(4)]
            if OPT['stream']:
                for x in f:
                    a(f'v_add_f32 v{x}, 0x00800000, v{x}')
            encode4(f, o + 2 * h)
        a(f"""v_mov_b32 v{o + 4}, v{o}
        v_mov_b32 v{o + 5}, v{o + 1}
        v_mov_b32_dpp v{o}, v{o + 2} row_ror:8 row_mask:0xf bank_mask:0xc
        v_mov_b32_dpp v{o + 1}, v{o + 3} row_ror:8 row_mask:0xf bank_mask:0xc
        v_mov_b32_dpp v{o + 2}, v{o + 4} row_ror:8 row_mask:0xf bank_mask:0x3
        v_mov_b32_dpp v{o + 3}, v{o + 5} row_ror:8 row_mask:0xf bank_mask:0x3
        buffer_store_dwordx4 {vr(o, 4)}, v9, s[44:47], 0 offen offset:{rp * 512} {st}""")
    a('K1_EPIV:')
    for r in range(4):
        a(f's_waitcnt lgkmcnt({6 - 2 * r})')
        o = FB + r * 4
        t0 = FB + 16 + (r & 1) * 8
        fa, fb = AC + r, AC + 4 + r
        ra, rb = AC + 8 + r, AC + 12 + r
        if OPT['round_phi']:
            bf16_round_pair(a, fa, fb, 11)
        for k in range(3):
            sreg = VV + r * 4 + k
            a(f'''v_lshlrev_b32 v{t0 + 2 * k}, 16, v{sreg}
            v_and_b32 v{t0 + 2 * k + 1}, {MASK}, v{sreg}''')
        for k in range(3):
            if OPT['stream']:
                a(f'''v_fmaak_f32 v{t0 + 2 * k}, v{t0 + 2 * k}, v{fa}, 0x00800000
                v_fmaak_f32 v{t0 + 2 * k + 1}, v{t0 + 2 * k + 1}, v{fb}, 0x00800000''')
            else:
                a(f'''v_mul_f32 v{t0 + 2 * k}, v{t0 + 2 * k}, v{fa}
                v_mul_f32 v{t0 + 2 * k + 1}, v{t0 + 2 * k + 1}, v{fb}''')
        if OPT['stream']:
            a(f'''v_add_f32 v{ra}, 0x00800000, v{ra}
            v_add_f32 v{rb}, 0x00800000, v{rb}''')
        encode4([t0, t0 + 1, t0 + 2, t0 + 3], o)
        encode4([t0 + 4, t0 + 5, ra, rb], o + 2)
        a(f'buffer_store_dwordx4 {vr(o, 4)}, v8, s[44:47], 0 offen offset:{r * 256} {st}')
    a('K1_GEMM_END:')
    stamp(a, 7, SV)
    stamp_out(a, SV, 's26', 0, 16)
    a('s_endpgm')

    SRC, DST = 8, 16
    PP = 24
    RC = 56
    BK = 76
    T = 84
    a(f'''K1_BIN:
    s_lshl_b32 s48, s2, 7
    v_lshrrev_b32 v4, 3, v0
    v_lshlrev_b32 v4, 13, v4
    v_and_b32 v5, 7, v0
    v_lshl_add_u32 v4, v5, 4, v4
    v_add_u32 v4, s48, v4
    v_lshrrev_b32 v5, 5, v0
    v_lshlrev_b32 v5, 13, v5
    v_and_b32 v6, 31, v0
    v_lshl_add_u32 v5, v6, 2, v5
    s_add_u32 s3, s48, {128 * 8192}
    v_add_u32 v5, s3, v5
    v_lshlrev_b32 v7, 4, v1
    v_mov_b32 v22, 0
    v_lshlrev_b32 v23, 2, v0
    v_cmp_gt_u32 vcc, 80, v0
    s_mov_b64 exec, vcc
    ds_write_b32 v23, v22 offset:{B_HIST}
    s_mov_b64 exec, -1
    s_lshl_b32 s49, s26, 12
    s_mov_b32 m0, s49
    s_mov_b32 s30, {E * 4}
    s_mov_b32 s31, 0x00020000
    s_mov_b32 s34, {E * 4}
    s_mov_b32 s35, 0x00020000
    s_mov_b32 s38, {N * 6}
    s_mov_b32 s39, 0x00020000
    s_waitcnt lgkmcnt(0)
    ''')
    stamp(a, 0, SV, True)
    stamp(a, 1, SV)
    a(f'''s_mov_b32 s28, s12
    s_mov_b32 s29, s13
    s_mov_b32 s32, s14
    s_mov_b32 s33, s15
    s_mov_b32 s36, s10
    s_mov_b32 s37, s11
    buffer_load_dwordx4 {vr(SRC, 4)}, v4, s[28:31], 0 offen {eld}
    buffer_load_dwordx4 {vr(DST, 4)}, v4, s[32:35], 0 offen {eld}
    s_cmp_eq_u32 s26, 15
    s_cbranch_scc1 K1_BIN_POSDONE''')
    for x in range(4):
        if x == 3:
            a('''s_cmp_eq_u32 s26, 14
            s_cbranch_scc1 K1_BIN_POSDONE''')
        a(f'buffer_load_dwordx4 v7, s[36:39], s49 offen offset:{x * 1024} lds')
    a(f'''K1_BIN_POSDONE:
    buffer_load_dword v{SRC + 4}, v5, s[28:31], 0 offen {eld}
    buffer_load_dword v{DST + 4}, v5, s[32:35], 0 offen {eld}
    v_cmp_gt_u32 vcc, {E * 4}, v5
    s_mov_b64 s[86:87], vcc
    s_mov_b64 s[84:85], -1
    s_movk_i32 s51, 6679
    s_mov_b64 s[90:91], 0
    v_mov_b32 v23, 1
    v_mov_b32 v{T + 9}, {MASK}
    v_mov_b32 v{T + 16}, {BCELL // 4}
    v_mov_b32 v{T + 17}, {B_STG}
    ''')
    srd_ws(a, 40, MISC_BASE, MISC_SIZE)
    for x in range(15 if OPT['d16'] else 0):
        a(f'v_mov_b64 {vr(PP + 2 * x, 2)}, 0')
    a('''s_waitcnt vmcnt(2)
    s_barrier''')
    stamp(a, 2, SV)

    def posread(p):
        b = PP + p * 6
        if p == 4:
            a('s_waitcnt vmcnt(0)')
        if OPT['d16']:
            a(f'''v_mul_u32_u24 v{T}, 6, v{SRC + p}
            v_mul_u32_u24 v{T + 1}, 6, v{DST + p}''')
            for k in range(3):
                a(f'ds_read_u16_d16_hi v{b + k}, v{T} offset:{2 * k}')
                a(f'ds_read_u16_d16_hi v{b + 3 + k}, v{T + 1} offset:{2 * k}')
        else:
            a(f'''v_mul_u32_u24 v{b + 4}, 6, v{SRC + p}
            v_mul_u32_u24 v{b + 5}, 6, v{DST + p}
            v_and_b32 v{T}, -4, v{b + 4}
            v_and_b32 v{T + 1}, -4, v{b + 5}
            ds_read2_b32 {vr(b, 2)}, v{T} offset0:0 offset1:1
            ds_read2_b32 {vr(b + 2, 2)}, v{T + 1} offset0:0 offset1:1''')

    def posdiff(p, X):
        b = PP + p * 6
        if OPT['d16']:
            for k in range(3):
                a(f'v_sub_f32 v{X[k]}, v{b + k}, v{b + 3 + k}')
            return
        m = T + 9
        a(f'''v_alignbyte_b32 v{b}, v{b + 1}, v{b}, v{b + 4}
        v_alignbyte_b32 v{b + 2}, v{b + 3}, v{b + 2}, v{b + 5}
        v_alignbyte_b32 v{b + 1}, v{b + 1}, v{b + 1}, v{b + 4}
        v_alignbyte_b32 v{b + 3}, v{b + 3}, v{b + 3}, v{b + 5}
        v_lshlrev_b32 v{X[0]}, 16, v{b}
        v_lshlrev_b32 v{b + 4}, 16, v{b + 2}
        v_and_b32 v{X[1]}, v{m}, v{b}
        v_and_b32 v{b + 5}, v{m}, v{b + 2}
        v_lshlrev_b32 v{X[2]}, 16, v{b + 1}
        v_lshlrev_b32 v{b + 3}, 16, v{b + 3}
        v_sub_f32 v{X[0]}, v{X[0]}, v{b + 4}
        v_sub_f32 v{X[1]}, v{X[1]}, v{b + 5}
        v_sub_f32 v{X[2]}, v{X[2]}, v{b + 3}''')

    def stage(p):
        R = RC + 4 * p
        a(f'''v_min_u32 v{T}, 0x80, v{R + 3}
        v_mad_u32_u24 v{T + 1}, v{BK + p}, v{T + 16}, v{T + 17}
        v_mad_u32_u24 v{T}, v{T}, 12, v{T + 1}
        s_mov_b64 exec, {sr(60 + 2 * p, 2)}
        ds_write2_b32 v{T}, v{R}, v{R + 1} offset0:0 offset1:1
        ds_write_b32 v{T}, v{R + 2} offset:8
        s_mov_b64 exec, -1''')

    groups = [(0, 1), (2, 3), (4,)]
    posread(0); posread(1)
    for gi, P in enumerate(groups):
        nxt = groups[gi + 1] if gi + 1 < len(groups) else ()
        for p in nxt:
            posread(p)
        a(f's_waitcnt lgkmcnt({(6 if OPT["d16"] else 2) * len(nxt)})')
        X = [[T + 2, T + 3, T + 4], [T + 5, T + 6, T + 7]]
        Q = [[T + 10, T + 11, T + 12], [T + 13, T + 14, T + 15]]
        tmp = T + 8
        ne = len(P)
        E2 = range(ne)

        def rnd_scalar(regs):
            if ne == 2:
                bf16_round_pair(a, regs[0], regs[1], tmp)
            else:
                bf16_round1(a, regs[0])
        for e in E2:
            posdiff(P[e], X[e])
        if gi:
            for p in groups[gi - 1]:
                stage(p)
        for e in E2:
            bf16_round_pair(a, X[e][0], X[e][1], tmp)
        rnd_scalar([X[e][2] for e in E2])
        for e in E2:
            for k in range(3):
                a(f'v_mul_f32 v{Q[e][k]}, v{X[e][k]}, v{X[e][k]}')
        for e in E2:
            bf16_round_pair(a, Q[e][0], Q[e][1], tmp)
        rnd_scalar([Q[e][2] for e in E2])
        for e in E2:
            a(f'v_add_f32 v{Q[e][0]}, v{Q[e][0]}, v{Q[e][1]}')
        for e in E2:
            a(f'''v_add_f32 v{Q[e][0]}, v{Q[e][0]}, v{Q[e][2]}
            v_mul_u32_u24 v{BK + P[e]}, s51, v{DST + P[e]}''')
        rnd_scalar([Q[e][0] for e in E2])
        for e in E2:
            a(f'''v_add_f32 v{Q[e][0]}, 0x322bcc77, v{Q[e][0]}
            v_lshrrev_b32 v{BK + P[e]}, 18, v{BK + P[e]}''')
        rnd_scalar([Q[e][0] for e in E2])
        for e in E2:
            a(f'v_sqrt_f32 v{Q[e][0]}, v{Q[e][0]}')
        for e in E2:
            a(f'v_and_b32 v{BK + P[e]}, -4, v{BK + P[e]}')
        rnd_scalar([Q[e][0] for e in E2])
        vm = 84 if P[0] < 4 else 86
        for e in E2:
            a(f'''v_cmp_gt_f32 vcc, 0x40a00000, v{Q[e][0]}
            v_rcp_f32 v{Q[e][1]}, v{Q[e][0]}
            s_and_b64 {sr(60 + 2 * P[e], 2)}, vcc, {sr(vm, 2)}''')
        for e in E2:
            a(f'''s_mov_b64 exec, {sr(60 + 2 * P[e], 2)}
            ds_add_rtn_u32 v{RC + 4 * P[e] + 3}, v{BK + P[e]}, v23 offset:{B_HIST}''')
        for e in reversed(E2):
            p = P[e]
            R = RC + 4 * p
            x0, x1, x2 = X[e]
            q0, q1, q2 = Q[e]
            if e != ne - 1:
                a(f's_mov_b64 exec, {sr(60 + 2 * p, 2)}')
            a(f'''v_lshrrev_b32 v{q0}, 11, v{q0}
            v_sub_u32 v{q0}, {GTOP * 32}, v{q0}
            v_cmp_ne_u32 vcc, {1999 * 32}, v{q0}
            v_fmaak_f32 v{x0}, v{x0}, v{q1}, 0x00800000
            v_fmaak_f32 v{x1}, v{x1}, v{q1}, 0x00800000
            v_fmaak_f32 v{x2}, v{x2}, v{q1}, 0x00800000
            v_cndmask_b32 v{q0}, 32, v{q0}, vcc
            v_sub_u32 v{x0}, v{x0}, v{SRC + p}
            v_sub_u32 v{x2}, v{x2}, v{DST + p}
            v_sub_u32 v{x1}, v{x1}, v{q0}
            v_add_u32 v{x0}, 0x8000, v{x0}
            v_add_u32 v{x1}, 0x8000, v{x1}
            v_add_u32 v{x2}, 0x8000, v{x2}
            v_cmp_lt_u32 vcc, {NFAST * 32 - 1}, v{q0}
            v_and_or_b32 v{R}, v{x0}, v{T + 9}, v{SRC + p}
            v_and_or_b32 v{R + 1}, v{x1}, v{T + 9}, v{q0}
            v_and_or_b32 v{R + 2}, v{x2}, v{T + 9}, v{DST + p}
            s_or_b64 s[90:91], s[90:91], vcc''')
        a('s_mov_b64 exec, -1')
    stamp(a, 3, SV)
    a('s_waitcnt lgkmcnt(0)')
    stage(4)
    a(f'''
    v_mov_b32 v4, {B_HIST + 256}
    s_mov_b64 exec, s[90:91]
    ds_write_b32 v4, v23
    s_mov_b64 exec, -1
    v_lshlrev_b32 v6, 2, v1
    s_mul_i32 s3, s26, {4 * BCELL}
    s_add_u32 s3, s3, {B_STG}
    v_add_u32 v5, s3, v7
    s_mul_i32 s51, s26, {4 * NCH * CELL}
    s_mul_i32 s3, s2, {CELL}
    s_add_u32 s51, s51, s3
    s_add_u32 s51, s51, {RECS_OFF}
    s_waitcnt lgkmcnt(0)
    s_barrier
    ds_read_b32 v8, v6 offset:{B_HIST}
    ds_read_b32 v22, v4
    ''')
    stamp(a, 4, SV)
    a('s_mov_b32 exec_hi, 0xffff')
    for c in range(4):
        a(f'ds_read_b128 {vr(PP + 4 * c, 4)}, v5 offset:{c * BCELL}')
    for c in range(4):
        a(f'''s_waitcnt lgkmcnt({3 - c})
        buffer_store_dwordx4 {vr(PP + 4 * c, 4)}, v7, s[40:43], s51 offen {st}
        s_add_u32 s51, s51, {NCH * CELL}''')
    a(f'''
    s_mov_b64 exec, -1
    v_cmp_lt_u32 vcc, 64, v8
    s_lshl_b32 s3, s26, 2
    s_lshr_b64 s[56:57], vcc, s3
    s_and_b32 s56, s56, 15
    s_cbranch_scc0 K1_BIN_XD
    s_sub_u32 s51, s51, {4 * NCH * CELL}
    s_mov_b32 exec_hi, 0xffff
    ''')
    for c in range(4):
        a(f'''s_bitcmp1_b32 s56, {c}
        s_cbranch_scc0 K1_BIN_X{c}
        ds_read_b128 {vr(PP + 16 + 4 * c, 4)}, v5 offset:{c * BCELL + 768}
        s_waitcnt lgkmcnt(0)
        buffer_store_dwordx4 {vr(PP + 16 + 4 * c, 4)}, v7, s[40:43], s51 offen offset:768 {st}
        K1_BIN_X{c}:
        s_add_u32 s51, s51, {NCH * CELL}''')
    a(f'''
    s_mov_b64 exec, -1
    K1_BIN_XD:
    v_cmp_lt_u32 vcc, 0x80, v8
    s_cbranch_vccz K1_BIN_CNT
    s_mul_i32 s51, s2, {CHUNK * 12}
    s_add_u32 s51, s51, {OVF_OFF}
    ''')
    for p in range(5):
        R = RC + 4 * p
        a(f'''v_cmp_lt_u32 vcc, 0x7f, v{R + 3}
        s_and_b64 exec, vcc, {sr(60 + 2 * p, 2)}
        ds_add_rtn_u32 v{T}, v4, v23 offset:4
        s_waitcnt lgkmcnt(0)
        v_mul_u32_u24 v{T}, 12, v{T}
        buffer_store_dwordx3 {vr(R, 3)}, v{T}, s[40:43], s51 offen
        s_mov_b64 exec, -1''')
    a(f'''
    s_barrier
    K1_BIN_CNT:
    s_cmp_lg_u32 s26, 15
    s_cbranch_scc1 K1_BIN_DONE
    ds_read_b32 v10, v4 offset:4
    s_lshl_b32 s50, s2, 8
    s_add_u32 s50, s50, {CNT_OFF}
    v_lshl_or_b32 v9, v22, 31, v8
    buffer_store_dword v9, v6, s[40:43], s50 offen
    s_mov_b64 exec, 1
    s_lshl_b32 s50, s2, 2
    s_add_u32 s50, s50, {CNT_OFF + 64 * 256}
    s_waitcnt lgkmcnt(0)
    buffer_store_dword v10, v6, s[40:43], s50 offen
    K1_BIN_DONE:''')
    stamp(a, 7, SV)
    stamp_out(a, SV, 's26', 0, 16)
    a('s_endpgm')

    a(f'''K1_MISC:
    s_cmp_ge_u32 s2, {R_WRF}
    s_cbranch_scc1 K1_WRF
    s_cmp_ge_u32 s26, 4
    s_cbranch_scc1 K1_END
    s_sub_u32 s27, s2, {R_GT}
    s_lshl_b32 s27, s27, 8
    v_add_u32 v4, s27, v0
    v_sub_u32 v5, {GTOP}, v4
    v_mov_b32 v6, {DMIN}
    v_cmp_gt_u32 vcc, 2, v4
    v_cndmask_b32 v5, v5, v6, vcc
    s_waitcnt lgkmcnt(0)
    s_load_dwordx8 s[28:35], s[16:17], 0
    ''')
    srd_ws(a, 40, MISC_BASE + GT_OFF, 64000)
    a('''v_lshlrev_b32 v5, 16, v5
    v_rcp_f32 v6, v5
    v_mul_f32 v7, 0x40490fdb, v5''')
    bf16_round1(a, 7)
    a('v_mul_f32 v7, 0x3e4ccccd, v7')
    bf16_round1(a, 7)
    a('''v_mul_f32 v7, 0x3e22f983, v7
    v_cos_f32 v7, v7''')
    bf16_round1(a, 7)
    a('v_add_f32 v7, 1.0, v7')
    bf16_round1(a, 7)
    a('''v_mul_f32 v7, 0.5, v7
    v_cmp_ne_u32 vcc, 0, v4
    v_cndmask_b32 v7, 0, v7, vcc
    s_waitcnt lgkmcnt(0)''')
    for k2 in range(8):
        a(f'''s_lshl_b32 s36, s{28 + k2}, 16
        s_and_b32 s37, s{28 + k2}, 0xffff0000
        v_mul_f32 v8, s36, v5
        v_mul_f32 v9, s37, v5''')
        bf16_round_pair(a, 8, 9, 10)
        a('''v_mul_f32 v8, 0x3e22f983, v8
        v_mul_f32 v9, 0x3e22f983, v9
        v_rndne_f32 v10, v8
        v_rndne_f32 v11, v9
        v_sub_f32 v8, v8, v10
        v_sub_f32 v9, v9, v11
        v_sin_f32 v8, v8
        v_sin_f32 v9, v9''')
        bf16_round_pair(a, 8, 9, 10)
        a('''v_mul_f32 v8, v8, v6
        v_mul_f32 v9, v9, v6''')
        bf16_round_pair(a, 8, 9, 10)
        a(f'''v_mul_f32 v8, v8, v7
        v_mul_f32 v9, v9, v7
        v_cvt_pk_bf16_f32 v{16 + k2}, v8, v9''')
    a(f'''v_lshlrev_b32 v4, 5, v4
    buffer_store_dwordx4 v[16:19], v4, s[40:43], 0 offen {st}
    buffer_store_dwordx4 v[20:23], v4, s[40:43], 0 offen offset:16 {st}
    s_endpgm
    K1_WRF:
    s_waitcnt lgkmcnt(0)
    ''')
    srd(a, 28, 's22', 's23', 16 * 768)
    srd_ws(a, 40, MISC_BASE + WRF_OFF, 12288)
    a(f'''
    v_mul_u32_u24 v4, 3072, v2
    v_and_b32 v5, 7, v3
    v_lshl_add_u32 v4, v5, 3, v4
    v_lshrrev_b32 v6, 3, v3
    v_lshlrev_b32 v8, 4, v0
    s_cmp_lt_u32 s26, 8
    s_cbranch_scc0 K1_WRF_S
    s_and_b32 s3, s26, 1
    s_add_u32 s3, s3, 1
    s_lshl_b32 s3, s3, 8
    s_lshr_b32 s4, s26, 1
    s_lshl_b32 s4, s4, 6
    s_add_u32 s3, s3, s4
    v_lshl_add_u32 v4, v6, 2, v4
    s_branch K1_WRF_GO
    K1_WRF_S:
    s_and_b32 s3, s26, 1
    s_lshl_b32 s3, s3, 2
    s_and_b32 s4, s26, 2
    s_lshl_b32 s4, s4, 5
    s_add_u32 s3, s3, s4
    v_lshl_add_u32 v4, v6, 7, v4
    K1_WRF_GO:
    buffer_load_dword v12, v4, s[28:31], s3 offen
    buffer_load_dword v13, v4, s[28:31], s3 offen offset:768
    buffer_load_dword v14, v4, s[28:31], s3 offen offset:1536
    buffer_load_dword v15, v4, s[28:31], s3 offen offset:2304
    s_waitcnt vmcnt(0)
    v_perm_b32 v16, v13, v12, s54
    v_perm_b32 v17, v15, v14, s54
    v_perm_b32 v18, v13, v12, s55
    v_perm_b32 v19, v15, v14, s55
    buffer_store_dwordx4 v[16:19], v8, s[40:43], 0 offen {st}
    K1_END:
    s_endpgm''')
    return a


def gen_k2():
    a = Asm()
    stream = OPT['stream']
    warm = OPT['warm']
    SV = 127
    D = 8
    W = 24
    BWV = 56
    BWS = 64
    A = 80
    GA = 82
    SR = 84
    RH = 88
    ACC = 96
    U = 104
    Z = 112
    cLM, cQ8, cOV, cOS = 116, 117, 118, 119
    aZ, aR1, aR2, aG = 120, 121, 122, 123
    aS, aGS = 124, 125
    c256, c1024 = 4, 5
    vMask = 6
    zV0, zS0 = 7, 83
    FVn, FSn = RH + 6, RH + 7
    CV = L_ZA
    CS = L_ZA + 24576
    STO = L_HIST
    SVR = [BWS, BWS + 4, BWS + 8]
    REC = 8
    HA = 44
    SQ = 84
    ZOFF = L_ZA - L_REC // 2
    BASE = L_REC // 8 + 1

    a(f'''
    s_cmp_ge_u32 s2, 256
    s_cbranch_scc1 K2_END
    s_load_dwordx2 s[24:25], s[0:1], 80
    s_load_dwordx2 s[44:45], s[0:1], 0
    s_load_dwordx2 s[48:49], s[0:1], 64
    v_lshrrev_b32 v4, 6, v0
    v_and_b32 v1, 63, v0
    v_readfirstlane_b32 s30, v4
    v_lshrrev_b32 v2, 4, v1
    v_and_b32 v3, 15, v1
    s_and_b32 s26, s2, 3
    s_lshr_b32 s27, s2, 3
    s_lshl_b32 s27, s27, 1
    s_bfe_u32 s3, s2, 0x10002
    s_add_u32 s27, s27, s3
    s_lshl_b32 s6, s27, 4
    s_add_u32 s6, s6, s30
    s_mul_i32 s7, s6, {4 * CELL}
    s_add_u32 s7, s7, {RECS_OFF}
    s_lshl_b32 s6, s30, 8
    s_add_u32 s6, s6, s27
    s_lshl_b32 s6, s6, 2
    s_add_u32 s6, s6, {MISC_BASE + CNT_OFF}
    s_add_u32 s8, s7, {2 * CELL}
    v_mul_u32_u24 v100, 12, v1
    s_mov_b32 s42, {MISC_SIZE}
    s_mov_b32 s43, 0x00020000
    v_lshlrev_b32 v5, 4, v0
    v_mov_b64 v[104:105], 0
    v_mov_b64 v[106:107], 0
    v_add_u32 v103, {L_OB}, v5
    v_cmp_gt_u32 vcc, {(L_WRF - L_HIST) // 16}, v0
    s_waitcnt lgkmcnt(0)
    ''')
    stamp(a, 0, SV, True)
    stamp(a, 1, SV)
    a(f'''
    s_add_u32 s40, s24, {MISC_BASE}
    s_addc_u32 s41, s25, 0
    s_load_dword s12, s[24:25], s6
    s_load_dword s13, s[24:25], s6 offset:256
    s_load_dword s14, s[24:25], s6 offset:512
    s_load_dword s15, s[24:25], s6 offset:768
    buffer_load_dwordx3 {vr(REC, 3)}, v100, s[40:43], s7 offen
    buffer_load_dwordx3 {vr(REC + 4, 3)}, v100, s[40:43], s7 offen offset:{CELL}
    buffer_load_dwordx3 {vr(REC + 8, 3)}, v100, s[40:43], s8 offen
    buffer_load_dwordx3 {vr(REC + 12, 3)}, v100, s[40:43], s8 offen offset:{CELL}
    s_mov_b64 exec, vcc
    ds_write_b128 v5, v[104:107] offset:{L_HIST}
    s_mov_b64 exec, -1
    ds_write_b128 v103, v[104:107]
    ds_write_b128 v103, v[104:107] offset:16384
    ds_write_b128 v103, v[104:107] offset:32768
    s_mul_i32 s28, s27, {BN}
    s_mul_i32 s10, s27, {-4 * BN}
    s_sub_u32 s29, {N}, s28
    s_min_u32 s29, s29, {BN}
    s_mul_i32 s18, s26, {SN}
    s_min_u32 s18, s18, s29
    s_add_u32 s19, s18, {SN}
    s_min_u32 s19, s19, s29
    s_mov_b32 s46, {N * 1024}
    s_mov_b32 s47, 0x00020000
    s_mul_i32 s4, s26, {TAB}
    s_add_u32 s32, s24, s4
    s_addc_u32 s33, s25, 0
    s_mov_b32 s34, {TAB}
    s_mov_b32 s35, 0x00020000
    v_lshlrev_b32 v101, 4, v1
    v_mov_b32 v99, 1
    ''')

    def dma():
        a(f'''
        s_lshl_b32 s3, s30, 10
        s_add_u32 s4, s3, 0x4000
        s_mov_b32 m0, s3
        s_add_u32 s5, s3, 0x8000
        buffer_load_dwordx4 v101, s[40:43], s3 offen lds
        s_mov_b32 m0, s4
        s_lshl_b32 s6, s26, 11
        buffer_load_dwordx4 v101, s[40:43], s4 offen lds
        s_cmp_ge_u32 s30, 12
        s_cbranch_scc1 K2_DMA{dma.n}
        s_add_u32 s6, s6, {WRF_OFF - 6144}
        s_cmp_ge_u32 s30, 8
        s_cselect_b32 s6, {WRF_OFF}, s6
        s_add_u32 s6, s6, s3
        s_add_u32 s4, s3, {L_WRF - 6144}
        s_cmp_lt_u32 s30, 6
        s_cselect_b32 s4, s5, s4
        s_cselect_b32 s6, s5, s6
        s_mov_b32 m0, s4
        s_nop 0
        buffer_load_dwordx4 v101, s[40:43], s6 offen lds
        K2_DMA{dma.n}:
        ''')
        dma.n += 1
    dma.n = 0

    def touch():
        a(f'''s_lshr_b32 s3, s2, 3
        s_lshl_b32 s3, s3, 4
        s_add_u32 s3, s3, s30
        s_mul_i32 s3, s3, 5120
        v_lshlrev_b32 v98, 7, v1
        v_add_u32 v98, s3, v98
        s_mov_b32 exec_hi, 0xff
        buffer_load_dword v126, v98, s[32:35], 0 offen
        s_mov_b64 exec, -1''')

    if warm == 2:
        dma()
    a('s_waitcnt lgkmcnt(0)')
    stamp(a, 2, SV)
    a(f'''
    s_max_u32 s3, s12, s13
    s_max_u32 s4, s14, s15
    s_max_u32 s16, s3, s4
    s_mov_b32 s17, 0
    v_cmp_gt_u32 s[60:61], s12, v1
    v_cmp_gt_u32 s[62:63], s13, v1
    v_cmp_gt_u32 s[64:65], s14, v1
    v_cmp_gt_u32 s[66:67], s15, v1
    s_cmp_le_u32 s16, 64
    s_cbranch_scc1 K2_M_DONE
    v_mov_b32 v108, s12
    v_mov_b32 v109, s13
    v_mov_b32 v110, s14
    v_mov_b32 v111, s15
    s_mov_b32 s4, 0xffff0000
    s_mov_b32 s5, 0
    v_cndmask_b32 v108, v108, v109, s[4:5]
    s_mov_b32 s4, 0
    s_mov_b32 s5, 0xffff
    v_cndmask_b32 v108, v108, v110, s[4:5]
    s_mov_b32 s5, 0xffff0000
    v_cndmask_b32 v108, v108, v111, s[4:5]
    v_add_u32 v109, 64, v3
    v_cmp_gt_u32 s[68:69], v108, v109
    v_mul_u32_u24 v102, {CELL - 192}, v2
    v_add_u32 v102, v102, v100
    s_mov_b64 exec, s[68:69]
    buffer_load_dwordx3 {vr(REC + 16, 3)}, v102, s[40:43], s7 offen offset:768
    s_mov_b64 exec, -1
    s_cmp_le_u32 s16, 80
    s_cbranch_scc1 K2_M_DONE
    s_cmp_le_u32 s16, 128
    s_cbranch_scc1 K2_M_X
    s_mov_b32 s17, 1
    s_mov_b32 s16, 0
    s_mov_b64 s[60:61], 0
    s_mov_b64 s[62:63], 0
    s_mov_b64 s[64:65], 0
    s_mov_b64 s[66:67], 0
    s_branch K2_M_DONE
    K2_M_X:
    v_add_u32 v109, 80, v1
    ''')
    for x in range(4):
        a(f'''v_cmp_gt_u32 {sr(70 + 2 * x, 2)}, s{12 + x}, v109
        s_mov_b64 exec, {sr(70 + 2 * x, 2)}
        buffer_load_dwordx3 {vr(REC + 20 + 4 * x, 3)}, v100, s[40:43], s{7 + x // 2} offen offset:{960 + (x & 1) * CELL}
        s_mov_b64 exec, -1''')
    a(f'''K2_M_DONE:
    s_barrier
    s_cmp_eq_u32 s17, 0
    s_cbranch_scc1 K2_NOFLAG
    v_mov_b32 v108, {L_FLAG}
    ds_write_b32 v108, v99
    K2_NOFLAG:
    s_waitcnt vmcnt(0)''')
    if warm == 2:
        touch()
    stamp(a, 3, SV)

    def for_records(fn, tag):
        for x in range(4):
            a(f's_mov_b64 exec, {sr(60 + 2 * x, 2)}')
            fn(x)
        a(f'''s_cmp_le_u32 s16, 64
        s_cbranch_scc1 {tag}
        s_mov_b64 exec, s[68:69]''')
        fn(4)
        a(f'''s_cmp_le_u32 s16, 80
        s_cbranch_scc1 {tag}''')
        for x in range(5, 9):
            a(f's_mov_b64 exec, {sr(60 + 2 * x, 2)}')
            fn(x)
        a(f'''{tag}:
        s_mov_b64 exec, -1''')

    def f_hist(x):
        R = REC + 4 * x
        a(f'''v_mad_u32_u16 v{HA + x}, v{R + 2}, 4, s10
        ds_add_rtn_u32 v{R + 3}, v{HA + x}, v99 offset:{L_HIST}''')
    for_records(f_hist, 'K2_H_DONE')
    sk = OPT['skew']

    def setup():
        if warm != 2:
            dma()
        a(f'''
        v_lshlrev_b32 v{cQ8}, 3, v2
        v_lshlrev_b32 v{cLM}, 4, v3
        v_and_b32 v104, 7, v3
        v_lshrrev_b32 v105, 3, v3
        v_lshlrev_b32 v104, 3, v104
        s_lshl_b32 s3, s28, 8
        s_sub_u32 s3, {L_OB + 64}, s3
        v_lshl_add_u32 v{cOV}, v105, 2, v104
        v_add_u32 v{cOV}, s3, v{cOV}
        v_lshl_add_u32 v{cOS}, v105, 9, v104
        v_add_u32 v{cOS}, {L_OB}, v{cOS}
        v_mov_b32 v{c256}, 0x100
        v_mov_b32 v{c1024}, 0x400
        v_mov_b32 v{vMask}, {MASK}
        v_lshrrev_b32 v106, 2, v3
        v_and_b32 v107, 3, v3
        v_lshlrev_b32 v107, 3, v107
        s_add_u32 s36, s24, {TABS_BASE}
        s_addc_u32 s37, s25, 0
        s_sub_u32 s20, s19, s18
        s_add_u32 s11, s28, s18
        v_mov_b32 v110, 0
        s_lshl_b32 s3, s18, 2
        v_writelane_b32 v110, s3, 1
        s_lshl_b32 s3, s29, 2
        v_mov_b32 v111, s3
        s_lshl_b32 s3, s19, 2
        v_writelane_b32 v111, s3, 1
        s_movk_i32 s3, {L_FLAG - L_START}
        v_writelane_b32 v111, s3, 2
        s_sub_u32 s3, 16, s30
        s_mul_i32 s3, s3, {sk}
        s_add_u32 s3, s3, 128
        s_mul_i32 s22, s3, s30
        s_add_u32 s4, s30, 1
        s_sub_u32 s3, s3, {sk}
        s_mul_i32 s23, s3, s4
        ''')

    a('''s_cmp_lg_u32 s30, 0
    s_cbranch_scc1 K2_SETUP''')
    setup()
    a(f'''
    v_mov_b32 v60, 0xffff
    v_mov_b32 v61, 0
    s_add_u32 s3, s28, 159
    v_mov_b32 v62, s3
    s_waitcnt lgkmcnt(0)
    s_barrier
    ds_read_b32 v56, v100 offset:{L_HIST}
    ds_read_b32 v57, v100 offset:{L_HIST + 4}
    ds_read_b32 v58, v100 offset:{L_HIST + 8}
    s_waitcnt lgkmcnt(0)
    v_add3_u32 v59, v56, v57, v58
    v_mov_b32 v96, v59
    ''')
    scan64(a, 96)
    a(f'''
    v_add_u32 v96, {BASE}, v96
    v_sub_u32 v93, v96, v59
    v_readlane_b32 s3, v96, 63
    v_add_u32 v94, v93, v56
    v_add_u32 v95, v94, v57
    ds_write_b32 v100, v93 offset:{L_START}
    ds_write_b32 v100, v94 offset:{L_START + 4}
    ds_write_b32 v100, v95 offset:{L_START + 8}
    s_cmp_gt_u32 s3, {OPT.get('rcap', RCAP) + BASE}
    s_cbranch_scc1 K2_NOSCAN
    v_add_u32 v93, s3, v1
    v_lshlrev_b32 v94, 3, v93
    v_lshlrev_b32 v95, 2, v93
    ds_write_b64 v94, v[60:61]
    ds_write_b32 v95, v62 offset:{ZOFF}
    v_mov_b32 v93, {L_ZA}
    ds_write_b32 v93, v60
    s_branch K2_NOSCAN
    K2_SETUP:
    s_waitcnt lgkmcnt(0)
    s_barrier''')
    setup()
    a('''
    K2_NOSCAN:
    s_waitcnt lgkmcnt(0)
    s_barrier
    ''')
    stamp(a, 4, SV)
    if warm == 1:
        touch()
    a(f'''ds_read_b32 v110, v110 offset:{L_START}
    ds_read_b32 v111, v111 offset:{L_START}''')

    def f_start(x):
        a(f'ds_read_b32 v{SQ + x}, v{HA + x} offset:{L_START}')
    for_records(f_start, 'K2_S1_DONE')
    a(f'''s_waitcnt lgkmcnt(0)
    v_readlane_b32 s17, v111, 0
    v_readlane_b32 s3, v111, 2
    v_sub_u32 v111, v111, v110
    v_add_u32 v111, 15, v111
    v_lshrrev_b32 v111, 4, v111
    s_cmp_gt_u32 s17, {OPT.get('rcap', RCAP) + BASE}
    s_cbranch_scc1 K2_FALLBACK
    s_cmp_lg_u32 s3, 0
    s_cbranch_scc1 K2_FALLBACK
    ''')

    def f_scatter(x):
        R = REC + 4 * x
        a(f'''v_add_lshl_u32 v{SQ + x}, v{SQ + x}, v{R + 3}, 2
        v_add_u32 v{HA + x}, v{SQ + x}, v{SQ + x}
        ds_write_b32 v{SQ + x}, v{R + 2} offset:{ZOFF}
        ds_write_b64 v{HA + x}, {vr(R, 2)}''')
    for_records(f_scatter, 'K2_S2_DONE')
    a(f'''
    v_mul_u32_u24 v108, s22, v111
    v_mul_u32_u24 v109, s23, v111
    v_lshrrev_b32 v108, 11, v108
    v_lshrrev_b32 v109, 11, v109
    v_sub_u32 v109, v109, v108
    v_lshl_add_u32 v108, v108, 4, v110
    v_lshlrev_b32 v108, 3, v108
    v_readlane_b32 s21, v109, 0
    v_readlane_b32 s23, v109, 1
    v_readlane_b32 s12, v108, 0
    v_readlane_b32 s13, v108, 1
    s_lshl_b32 s4, s21, 5
    s_lshl_b32 s5, s23, 5
    s_sub_u32 s13, s13, 32
    v_mul_u32_u24 v{aR1}, s4, v2
    v_mad_u32_u24 v{aG}, s4, v106, v107
    v_mul_u32_u24 v{aS}, s5, v2
    v_mad_u32_u24 v{aGS}, s5, v106, v107
    v_add_u32 v{aR1}, s12, v{aR1}
    v_add_u32 v{aG}, s12, v{aG}
    v_add_u32 v{aS}, s13, v{aS}
    v_add_u32 v{aGS}, s13, v{aGS}
    v_lshrrev_b32 v{zV0}, 1, v{aR1}
    v_lshrrev_b32 v{zS0}, 1, v{aS}
    s_lshl_b32 s12, s21, 4
    s_lshl_b32 s13, s23, 4
    s_cmp_gt_u32 s21, 1
    s_cbranch_scc0 K2_SHORT
    v_add_u32 v{aR2}, 32, v{aR1}
    v_add_u32 v{U + 5}, 32, v{aG}
    K2_SHORTRET:
    v_lshrrev_b32 v{aZ}, 1, v{aR1}
    s_mul_i32 s58, s21, 11
    s_lshr_b32 s59, s58, 5
    s_lshr_b32 s58, s58, 4
    s_max_u32 s58, s58, 2
    s_max_u32 s59, s59, 2
    s_mov_b32 s31, s21
    s_mov_b32 s9, 0
    s_mov_b64 s[52:53], -1
    s_mov_b64 s[54:55], 0
    s_mov_b64 s[56:57], 0
    s_waitcnt vmcnt({1 if warm else 0}) lgkmcnt(0)
    s_barrier
    ''')
    deferred = [f'''K2_SHORT:
    v_add_u32 v{aR2}, 32, v{aS}
    v_add_u32 v{U + 5}, 32, v{aGS}
    s_cmp_eq_u32 s21, 1
    s_cbranch_scc1 K2_SHORTRET
    v_mov_b32 v{aR1}, v{aR2}
    v_mov_b32 v{aG}, v{U + 5}
    v_add_u32 v{aR2}, 32, v{aR2}
    v_add_u32 v{U + 5}, 32, v{U + 5}
    s_mov_b32 s32, s36
    s_mov_b32 s33, s37
    s_cmp_eq_u32 s23, 0
    s_cselect_b32 s34, 0, s34
    s_branch K2_SHORTRET''']
    stamp(a, 5, SV)

    def gather(r):
        a(f'''v_lshl_add_u32 v{U + 7}, v{SR + r}, 8, v{cLM}
        buffer_load_dwordx4 {vr(D + 4 * r, 4)}, v{U + 7}, s[32:35], 0 offen''')

    for r in range(4):
        a(f'ds_read_u16 v{SR + r}, v{aR1} offset:{8 * r}')
    a(f'ds_read_u16 v{GA}, v{aG} offset:4')
    for x in range(6):
        a(f'ds_read_b128 {vr(BWV + 4 * x, 4)}, v101 offset:{L_WRF + 1024 * x}')
    if OPT['prio']:
        a('s_setprio 3')
    a(f'''v_mov_b32 v{aG}, v{U + 5}
    s_waitcnt lgkmcnt(7)''')
    for r in range(4):
        gather(r)
    a(f'''s_waitcnt lgkmcnt(6)
    v_add_u32 v{GA}, v{GA}, v{cQ8}
    ds_read_b64 {vr(A, 2)}, v{GA}
    ds_read_u16 v{GA}, v{aG} offset:4''')
    for r in range(4):
        a(f'''ds_read_b64 {vr(RH + 2 * r, 2)}, v{aR1} offset:{8 * r}
        ds_read_b32 v{Z + r}, v{aZ} offset:{ZOFF + 4 * r}
        ds_read_u16 v{SR + r}, v{aR2} offset:{8 * r}''')
    a(f'''v_mov_b64 {vr(ACC, 2)}, 0
    v_mov_b64 {vr(ACC + 2, 2)}, 0
    v_mov_b64 {vr(ACC + 4, 2)}, 0
    v_mov_b64 {vr(ACC + 6, 2)}, 0
    s_cmp_eq_u32 s21, 0
    s_cbranch_scc1 K2_NOV
    ''')

    def top(nm, bw, lg, isv):
        a(f's_waitcnt lgkmcnt({lg})')
        for x in range(nm):
            a(f'v_mfma_f32_16x16x16_bf16 {vr(W + 4 * x, 4)}, {vr(A, 2)}, {vr(bw + 2 * x, 2)}, 0')
        a(f'''v_add_u32 v{GA}, v{GA}, v{cQ8}
        v_lshrrev_b32 v{aZ}, 1, v{aR2}
        ds_read_b64 {vr(A, 2)}, v{GA}''')
        if isv:
            a(f'''v_mov_b32 v{aR1}, v{aR2}
            s_cmp_eq_u32 s21, s31
            s_cbranch_scc1 K2_EVENT
            K2_EVRET:''')
        a(f'''v_add_u32 v{aG}, 32, v{aG}
        v_add_u32 v{aR2}, 32, v{aR2}
        ds_read_u16 v{GA}, v{aG} offset:4''')

    def unpack(r):
        d = D + 4 * r
        if stream:
            a(f'''v_lshlrev_b64 {vr(U, 2)}, 16, {vr(d, 2)}
            v_lshlrev_b64 {vr(U + 2, 2)}, 16, {vr(d + 2, 2)}''')
        else:
            for x in range(4):
                a(f'v_lshlrev_b32 v{U + x}, 16, v{d + x}')
            for x in range(4):
                a(f'v_and_b32 v{d + x}, v{vMask}, v{d + x}')
        return [U, d, U + 1, d + 1, U + 2, d + 2, U + 3, d + 3]

    def fmac(acc, x, y):
        if (acc & 1) == (x & 1) == (y & 1):
            OPT['_bankconf'] = OPT.get('_bankconf', 0) + 1
        a(f'v_fmac_f32 v{acc}, v{x}, v{y}')

    def pk(acc, x, y, sx=None, sy=None):
        def sel(reg, b):
            return (reg, 0, 1) if b is None else (reg & ~1, reg & 1, reg & 1)
        x0, xl, xh = sel(x, sx)
        y0, yl, yh = sel(y, sy)
        a(f'v_pk_fma_f32 {vr(acc, 2)}, {vr(x0, 2)}, {vr(y0, 2)}, {vr(acc, 2)} '
          f'op_sel:[{xl},{yl},0] op_sel_hi:[{xh},{yh},1]')

    vacc = [ACC + 0, ACC + 2, ACC + 1, ACC + 3, ACC + 4, ACC + 5]
    sacc = [ACC + 1, ACC + 3, ACC + 0, ACC + 2, ACC + 5, ACC + 7, ACC + 4, ACC + 6]

    def flush_body(kind, z):
        if kind == 'V':
            a(f'v_mad_u32_u16 v{U + 6}, v{z}, v{c256}, v{cOV}')
            for k in range(3):
                a(f'v_cvt_pk_bf16_f32 v{U + k}, v{vacc[2 * k]}, v{vacc[2 * k + 1]}')
            for k in range(3):
                a(f'v_mov_b64 {vr(ACC + 2 * k, 2)}, 0')
            a(f'''ds_write2_b32 v{U + 6}, v{U}, v{U + 1} offset0:0 offset1:16
            ds_write_b32 v{U + 6}, v{U + 2} offset:128''')
        else:
            a(f'v_subrev_u16 v{U + 6}, s11, v{z}')
            for m in range(4):
                a(f'v_cvt_pk_bf16_f32 v{U + m}, v{sacc[2 * m]}, v{sacc[2 * m + 1]}')
            a(f'''v_cmp_gt_u16 vcc, s20, v{U + 6}
            v_mad_u32_u16 v{U + 6}, v{U + 6}, v{c1024}, v{cOS}''')
            for k in range(4):
                a(f'v_mov_b64 {vr(ACC + 2 * k, 2)}, 0')
            a(f'''s_mov_b64 exec, vcc
            ds_write2_b64 v{U + 6}, {vr(U, 2)}, {vr(U + 2, 2)} offset0:0 offset1:32''')
        a('s_mov_b64 exec, -1')

    def flush(kind, r):
        L = f'K2_{kind}F{r}'
        if r == 3:
            a(f'''s_and_b64 vcc, vcc, s[52:53]
            s_cbranch_scc0 {L}''')
        else:
            a(f's_cbranch_vccz {L}')
        a('s_mov_b64 exec, vcc')
        flush_body(kind, Z + r)
        a(f'{L}:')

    def phase_end(kind):
        z0, ln, off, fin, fn, stat = (zV0, 's12', 0, 's[54:55]', FVn, zV0) if kind == 'V' else (zS0, 's13', 16, 's[56:57]', FSn, zS0)
        T = W
        a(f'''v_add_u32 v{T + 4}, {ZOFF + off - 4}, v{z0}
        v_add_u32 v{T + 5}, {ln}, v{T + 4}
        ds_read2_b32 {vr(T, 2)}, v{T + 4} offset0:0 offset1:1
        ds_read2_b32 {vr(T + 2, 2)}, v{T + 5} offset0:0 offset1:1
        s_waitcnt lgkmcnt(0)
        v_cmp_eq_u16 {fin}, v{T}, v{T + 1}
        v_cmp_eq_u16 s[4:5], v{T + 1}, v{T + 2}
        v_cmp_ne_u16 s[6:7], v{T + 2}, v{T + 3}
        v_mov_b32 v{fn}, v{T + 1}
        v_mov_b32 v{stat}, 1
        s_and_b64 s[4:5], s[4:5], {fin}
        s_andn2_b64 s[4:5], s[4:5], s[6:7]
        s_andn2_b64 {fin}, {fin}, s[4:5]
        v_cndmask_b32 v{stat}, v{stat}, 2, s[4:5]
        v_cndmask_b32 v{stat}, v{stat}, 0, s[6:7]
        s_mov_b64 exec, s[6:7]''')
        flush_body(kind, T + 2)
        if kind == 'V':
            for x in range(3):
                a(f'''v_mov_b64 {vr(RH + 2 * x, 2)}, {vr(ACC + 2 * x, 2)}
                v_mov_b64 {vr(ACC + 2 * x, 2)}, 0''')

    a('K2_VLOOP:')
    top(4, BWV, 12, True)
    for r in range(4):
        a(f's_waitcnt vmcnt(3) lgkmcnt({9 if r < 3 else 7})')
        f = unpack(r)
        w = lambda x: W + 4 * x + r
        h = RH + 2 * r
        ta, tb = U + 4, U + 5
        a(f'''v_mul_f32 v{tb}, v{f[7]}, v{w(3)}
        v_mul_f32 v{ta}, v{f[6]}, v{w(2)}''')
        fmac(vacc[5], f[5], w(1))
        fmac(vacc[4], f[4], w(0))
        pk(ACC + 2, f[1], w(1), sy=1)
        gather(r)
        a(f'v_cmp_ne_u16 vcc, v{Z + r}, v{Z + (r + 1) % 4}')
        pk(ACC, f[0], w(0), sy=1)
        pk(ACC + 4, ta, Z + r, sy=1)
        pk(ACC + 2, tb, h, sx=1)
        pk(ACC, ta, h, sx=1)
        flush('V', r)
        a(f'''ds_read_b64 {vr(h, 2)}, v{aR1} offset:{8 * r}
        ds_read_b32 v{Z + r}, v{aZ} offset:{ZOFF + 4 * r}
        ds_read_u16 v{SR + r}, v{aR2} offset:{8 * r}''')
    a('''s_sub_u32 s21, s21, 1
    s_cmp_lg_u32 s21, 0
    s_cbranch_scc1 K2_VLOOP''')
    phase_end('V')
    deferred.append(f'''K2_EVENT:
    s_cmp_gt_u32 s21, s58
    s_cselect_b32 s31, s58, s59
    s_cbranch_scc1 K2_EVRET
    {'s_setprio 2' if OPT['prio'] else ''}
    s_cmp_gt_u32 s21, s59
    s_cbranch_scc1 K2_EVRET
    {'s_setprio 1' if OPT['prio'] else ''}
    s_mov_b32 s31, 2
    s_cmp_gt_u32 s21, 2
    s_cbranch_scc1 K2_EVRET
    s_mov_b32 s31, 1
    s_cmp_eq_u32 s21, 2
    s_cbranch_scc0 K2_EV1
    v_mov_b32 v{aR2}, v{aS}
    v_mov_b32 v{aG}, v{aGS}
    s_branch K2_EVRET
    K2_EV1:
    s_mov_b32 s32, s36
    s_mov_b32 s33, s37
    s_mov_b64 s[52:53], 0
    s_cmp_eq_u32 s23, 0
    s_cselect_b32 s34, 0, s34
    s_branch K2_EVRET
    K2_NOV:
    v_mov_b32 v{zV0}, 3
    s_waitcnt lgkmcnt(0)
    s_branch K2_VDONE
    K2_NOS:
    v_mov_b32 v{zS0}, 3
    s_branch K2_STREAM_DONE''')
    a('''K2_VDONE:
    s_cmp_eq_u32 s23, 0
    s_cbranch_scc1 K2_NOS''')
    if OPT['prio']:
        a('s_setprio 0')
    a('K2_SLOOP:')
    top(8, BWS, 8, False)
    a('''s_sub_u32 s23, s23, 1
    s_cmp_eq_u32 s23, 0
    s_cselect_b32 s34, 0, s34
    s_cselect_b64 s[52:53], 0, -1''')
    for r in range(4):
        a(f's_waitcnt vmcnt(3) lgkmcnt({7 if r < 3 else 5})')
        f = unpack(r)
        for t in (1, 3, 5, 7):
            fmac(sacc[t], f[t], W + 4 * t + r)
        gather(r)
        a(f'v_cmp_ne_u16 vcc, v{Z + r}, v{Z + (r + 1) % 4}')
        for t in (0, 2, 4, 6):
            fmac(sacc[t], f[t], W + 4 * t + r)
        flush('S', r)
        a(f'''ds_read_b32 v{Z + r}, v{aZ} offset:{ZOFF + 4 * r}
        ds_read_u16 v{SR + r}, v{aR2} offset:{8 * r}''')
    a('''s_cmp_lg_u32 s23, 0
    s_cbranch_scc1 K2_SLOOP''')
    phase_end('S')

    OBR = 24
    a(f'''
    K2_STREAM_DONE:
    s_setprio 0
    s_lshl_b32 s3, s30, 2
    s_mov_b32 s50, {N * 1024}
    s_mov_b32 s51, 0x00020000
    s_add_u32 s4, s28, s3
    s_lshl_b32 s4, s4, 10
    s_lshl_b32 s5, s26, 6
    s_add_u32 s4, s4, s5
    s_add_u32 s5, s11, s30
    s_lshl_b32 s5, s5, 10
    s_lshl_b32 s6, s20, 2
    v_add_u32 v44, s3, v2
    v_and_b32 v45, 3, v1
    v_lshrrev_b32 v49, 2, v3
    v_lshlrev_b32 v45, 4, v45
    v_lshl_add_u32 v46, v2, 10, v45
    v_lshl_add_u32 v46, v49, 8, v46
    v_add_u32 v46, s4, v46
    v_lshl_add_u32 v47, v2, 6, v45
    v_add_u32 v47, s5, v47
    v_cmp_eq_u32 vcc, 0, v49
    v_mov_b32 v50, 0x10000
    v_mov_b32 v51, 0x4000
    v_mov_b32 v52, s29
    v_mov_b32 v53, s6
    v_cndmask_b32 v46, v46, v47, vcc
    v_cndmask_b32 v50, v50, v51, vcc
    v_cndmask_b32 v52, v52, v53, vcc
    v_sub_u32 v52, v52, v44
    v_add_u32 v47, v46, v50
    v_add_u32 v48, v47, v50
    v_cmp_lt_i32 s[80:81], 0, v52
    v_cmp_lt_i32 s[82:83], 64, v52
    v_cmp_lt_i32 vcc, 0x80, v52
    s_mov_b64 s[84:85], vcc
    v_lshlrev_b32 v43, 4, v0
    v_add_u32 v43, {L_OB}, v43
    ''')
    for it in range(3):
        a(f'''s_mov_b64 exec, {sr(80 + 2 * it, 2)}
        buffer_load_dwordx4 {vr(SVR[it], 4)}, v{46 + it}, s[44:47], 0 offen {OPT['k2ld']}''')
    a('''s_mov_b64 exec, -1
    s_cmp_lg_u32 s9, 0
    s_cbranch_scc1 K2_FB_FIN''')
    a(f'''
    v_lshlrev_b32 v40, 3, v0
    v_add_u32 v40, {CV}, v40
    v_lshrrev_b32 v41, 4, v0
    v_lshlrev_b32 v41, 2, v41
    ds_write2st64_b32 v41, v{zV0}, v{zS0} offset0:{STO // 256} offset1:{STO // 256 + 1}
    v_mad_u32_u16 v54, v{FVn}, v{c256}, v{cOV}
    v_subrev_u16 v55, s11, v{FSn}
    v_cmp_gt_u16 vcc, s20, v55
    s_and_b64 s[56:57], s[56:57], vcc
    v_mad_u32_u16 v55, v55, v{c1024}, v{cOS}
    ''')
    stamp(a, 6, SV)
    OV, OS = 76, 84
    SUMV, SUMS = 24, 32
    CRV, CRS = 56, 104
    a(f'''s_mov_b64 exec, s[54:55]
    ds_read2_b32 {vr(OV, 2)}, v54 offset0:0 offset1:16
    ds_read_b32 v{OV + 2}, v54 offset:128
    s_mov_b64 exec, s[56:57]
    s_waitcnt lgkmcnt(2)
    ds_read2_b64 {vr(OS, 4)}, v55 offset0:0 offset1:32
    s_mov_b64 exec, -1
    v_cmp_lt_u32 vcc, 15, v0
    s_and_b64 s[60:61], s[54:55], vcc
    s_and_b64 s[62:63], s[56:57], vcc
    s_waitcnt lgkmcnt(0)''')
    for acc, n, ob, sm in ((vacc, 3, OV, SUMV), (sacc, 4, OS, SUMS)):
        for m in range(n):
            a(f'''v_lshlrev_b32 v{sm + acc[2 * m] - ACC}, 16, v{ob + m}
            v_and_b32 v{sm + acc[2 * m + 1] - ACC}, v{vMask}, v{ob + m}''')
    a('s_barrier')
    for x in range(3):
        a(f'ds_write_b64 v40, {vr(RH + 2 * x, 2)} offset:{8192 * x}')
    for x in range(4):
        a(f'ds_write_b64 v40, {vr(ACC + 2 * x, 2)} offset:{24576 + 8192 * x}')
    a(f'''s_waitcnt lgkmcnt(0)
    s_barrier
    K2_FIN_loop:
    v_subrev_u32 v40, 0x80, v40
    v_add_u32 v41, -4, v41
    s_or_b64 exec, s[60:61], s[62:63]
    s_cbranch_execz K2_FIN_wr
    ds_read2st64_b32 v[80:81], v41 offset0:{STO // 256} offset1:{STO // 256 + 1}
    s_mov_b64 exec, s[60:61]''')
    for x in range(3):
        a(f'ds_read_b64 {vr(CRV + 2 * x, 2)}, v40 offset:{8192 * x}')
    a('s_mov_b64 exec, s[62:63]')
    for x in range(4):
        a(f'ds_read_b64 {vr(CRS + 2 * x, 2)}, v40 offset:{24576 + 8192 * x}')
    a('''s_mov_b64 exec, -1
    v_cmp_lt_i32 s[64:65], 0, v41
    s_waitcnt lgkmcnt(4)
    v_cmp_ne_u32 s[4:5], 3, v80
    v_cmp_ne_u32 s[6:7], 3, v81
    v_cmp_lt_u32 s[66:67], 1, v80
    v_cmp_lt_u32 s[68:69], 1, v81
    s_and_b64 exec, s[60:61], s[4:5]''')
    for x in range(3):
        a(f'v_pk_add_f32 {vr(SUMV + 2 * x, 2)}, {vr(SUMV + 2 * x, 2)}, {vr(CRV + 2 * x, 2)}')
    a('''s_and_b64 exec, s[62:63], s[6:7]
    s_waitcnt lgkmcnt(0)''')
    for x in range(4):
        a(f'v_pk_add_f32 {vr(SUMS + 2 * x, 2)}, {vr(SUMS + 2 * x, 2)}, {vr(CRS + 2 * x, 2)}')
    a('''s_mov_b64 exec, -1
    s_and_b64 s[66:67], s[66:67], s[64:65]
    s_and_b64 s[68:69], s[68:69], s[64:65]
    s_and_b64 s[60:61], s[60:61], s[66:67]
    s_and_b64 s[62:63], s[62:63], s[68:69]
    s_branch K2_FIN_loop
    K2_FIN_wr:
    s_mov_b64 exec, -1''')
    for acc, n, ob, sm in ((vacc, 3, OV, SUMV), (sacc, 4, OS, SUMS)):
        for m in range(n):
            a(f'v_cvt_pk_bf16_f32 v{ob + m}, v{sm + acc[2 * m] - ACC}, v{sm + acc[2 * m + 1] - ACC}')
    a(f'''s_mov_b64 exec, s[54:55]
    ds_write2_b32 v54, v{OV}, v{OV + 1} offset0:0 offset1:16
    ds_write_b32 v54, v{OV + 2} offset:128
    s_mov_b64 exec, s[56:57]
    ds_write2_b64 v55, {vr(OS, 2)}, {vr(OS + 2, 2)} offset0:0 offset1:32
    s_mov_b64 exec, -1
    s_waitcnt lgkmcnt(0)
    s_barrier
    ds_read_b128 {vr(OBR, 4)}, v43
    ds_read_b128 {vr(OBR + 4, 4)}, v43 offset:16384
    ds_read_b128 {vr(OBR + 8, 4)}, v43 offset:32768
    ''')
    stamp(a, 7, SV)
    a('K2_EPI:')
    for it in range(3):
        if it == 2:
            a('''s_cmp_ge_u32 s30, 8
            s_cbranch_scc1 K2_EPI_DONE''')
        a(f's_waitcnt vmcnt(2) lgkmcnt({2 - it})')
        for x in range(4):
            s, o = SVR[it] + x, OBR + it * 4 + x
            a(f'''v_lshlrev_b32 v{U}, 16, v{s}
            v_and_b32 v{U + 1}, v{vMask}, v{s}
            v_lshlrev_b32 v{U + 2}, 16, v{o}
            v_and_b32 v{U + 3}, v{vMask}, v{o}
            v_add_f32 v{U}, v{U}, v{U + 2}
            v_add_f32 v{U + 1}, v{U + 1}, v{U + 3}
            v_cvt_pk_bf16_f32 v{s}, v{U}, v{U + 1}''')
        a(f'''s_mov_b64 exec, {sr(80 + 2 * it, 2)}
        buffer_store_dwordx4 {vr(SVR[it], 4)}, v{46 + it}, s[48:51], 0 offen {OPT['out_store']}
        s_mov_b64 exec, -1''')
    a('K2_EPI_DONE:')
    stamp_out(a, SV, 's30', 1, 16)
    a('s_endpgm')
    for d in deferred:
        a(d)
    ACB = L_TOTAL - 81920
    RR = 84
    a(f"""K2_FALLBACK:
    s_mov_b64 exec, -1
    s_lshl_b32 s6, s30, 8
    s_add_u32 s6, s6, s27
    s_lshl_b32 s6, s6, 2
    s_lshl_b32 s3, s30, 4
    s_add_u32 s6, s6, {MISC_BASE + CNT_OFF}
    s_add_u32 s3, s3, {MISC_BASE + CNT_OFF + 64 * 256}
    s_load_dword s60, s[24:25], s6
    s_load_dword s61, s[24:25], s6 offset:256
    s_load_dword s62, s[24:25], s6 offset:512
    s_load_dword s63, s[24:25], s6 offset:768
    s_load_dwordx4 s[64:67], s[24:25], s3
    s_mov_b32 s38, {TAB}
    s_mov_b32 s39, 0x00020000
    v_mov_b64 v[104:105], 0
    v_mov_b64 v[106:107], 0
    v_lshlrev_b32 v103, 4, v0
    v_add_u32 v103, {ACB}, v103
    v_add_u32 v102, 0x10000, v103
    s_waitcnt vmcnt(0)
    s_barrier
    """)
    for x in range(6):
        a(f'ds_read_b128 {vr(BWV + 4 * x, 4)}, v101 offset:{L_WRF + 1024 * x}')
    for x in range(4):
        a(f'ds_write_b128 v103, v[104:107] offset:{16384 * x}')
    a(f"""ds_write_b128 v102, v[104:107]
    v_mul_u32_u24 v120, 12, v3
    v_mul_u32_u24 v121, 48, v2
    v_lshlrev_b32 v122, 2, v2
    v_subrev_u32 v{cOV}, {L_OB}, v{cOV}
    v_subrev_u32 v{cOS}, {L_OB}, v{cOS}
    s_mul_i32 s8, s30, {4 * CHUNK * 12}
    s_add_u32 s8, s8, {OVF_OFF}
    s_mov_b32 s12, 0
    s_waitcnt lgkmcnt(0)
    s_barrier
    """)
    for x in range(4):
        a(f"""s_and_b32 s{60 + x}, s{60 + x}, 0xffff
        s_min_u32 s{60 + x}, s{60 + x}, 128
        s_min_u32 s{64 + x}, s{64 + x}, {CHUNK}""")
    a(f"""K2_FB_SEG:
    s_mov_b32 s14, s60
    s_mov_b32 s60, s61
    s_mov_b32 s61, s62
    s_mov_b32 s62, s63
    s_mov_b32 s63, s64
    s_mov_b32 s64, s65
    s_mov_b32 s65, s66
    s_mov_b32 s66, s67
    s_mul_i32 s13, s12, {CELL}
    s_add_u32 s13, s13, s7
    s_sub_u32 s3, s12, 4
    s_mul_i32 s3, s3, {CHUNK * 12}
    s_add_u32 s3, s3, s8
    s_cmp_ge_u32 s12, 4
    s_cselect_b32 s13, s3, s13
    K2_FB_BATCH:
    s_cmp_le_i32 s14, 0
    s_cbranch_scc1 K2_FB_NEXT
    buffer_load_dword v{GA}, v120, s[40:43], s13 offen offset:4
    """)
    for r in range(4):
        a(f'buffer_load_dwordx3 {vr(RR + 4 * r, 3)}, v121, s[40:43], s13 offen offset:{12 * r}')
    a(f"""s_waitcnt vmcnt(4)
    v_and_b32 v{GA}, 0xffff, v{GA}
    v_add_u32 v{GA}, v{GA}, v{cQ8}
    buffer_load_dwordx2 {vr(A, 2)}, v{GA}, s[40:43], 0 offen
    s_waitcnt vmcnt(1)""")
    for r in range(4):
        R = RR + 4 * r
        a(f"""v_mad_u32_u16 v{R + 3}, v{R}, v{c256}, v{cLM}
        buffer_load_dwordx4 {vr(D + 4 * r, 4)}, v{R + 3}, s[32:35], 0 offen
        v_add_u32 v{U}, {r}, v122
        v_cmp_gt_i32 {sr(68 + 2 * r, 2)}, s14, v{U}
        v_subrev_u16 v{U}, s28, v{R + 2}
        v_cmp_gt_u16 vcc, s29, v{U}
        s_and_b64 {sr(68 + 2 * r, 2)}, {sr(68 + 2 * r, 2)}, vcc""")
    a('s_waitcnt vmcnt(4)')
    for x in range(4):
        a(f'v_mfma_f32_16x16x16_bf16 {vr(W + 4 * x, 4)}, {vr(A, 2)}, {vr(BWV + 2 * x, 2)}, 0')
    a('s_waitcnt vmcnt(0)')
    for r in range(4):
        R = RR + 4 * r
        f = unpack(r)
        w = lambda x: W + 4 * x + r
        a(f"""v_mul_f32 v{U + 4}, v{f[6]}, v{w(2)}
        v_mul_f32 v{U + 5}, v{f[7]}, v{w(3)}
        v_mad_u32_u16 v{U + 6}, v{R + 2}, v{c256}, v{cOV}
        v_lshlrev_b32 v{U + 6}, 1, v{U + 6}
        v_add_u32 v{U + 6}, {ACB}, v{U + 6}""")
        for kk in range(3):
            for pa in range(2):
                a(f"""v_mul_f32 v{40 + 2 * kk + pa}, v{f[2 * kk + pa]}, v{w(pa)}
                v_fmac_f32 v{40 + 2 * kk + pa}, v{U + 4 + pa}, v{R + kk}""")
        a(f"""buffer_load_dwordx4 {vr(D + 4 * r, 4)}, v{R + 3}, s[36:39], 0 offen
        s_mov_b64 exec, {sr(68 + 2 * r, 2)}""")
        for kk in range(3):
            for pa in range(2):
                a(f'ds_add_f32 v{U + 6}, v{40 + 2 * kk + pa} offset:{128 * kk + 4 * pa}')
        a("""s_mov_b64 exec, -1
        s_waitcnt lgkmcnt(0)""")
    for x in range(8):
        a(f'v_mfma_f32_16x16x16_bf16 {vr(W + 4 * x, 4)}, {vr(A, 2)}, {vr(BWS + 2 * x, 2)}, 0')
    a('s_waitcnt vmcnt(0)')
    for r in range(4):
        R = RR + 4 * r
        f = unpack(r)
        a(f"""v_subrev_u16 v{U + 6}, s11, v{R + 2}
        v_cmp_gt_u16 vcc, s20, v{U + 6}
        v_mad_u32_u16 v{U + 6}, v{U + 6}, v{c1024}, v{cOS}
        v_lshlrev_b32 v{U + 6}, 1, v{U + 6}
        v_add_u32 v{U + 6}, {ACB}, v{U + 6}""")
        for t in range(8):
            a(f'v_mul_f32 v{f[t]}, v{f[t]}, v{W + 4 * t + r}')
        a(f's_and_b64 exec, vcc, {sr(68 + 2 * r, 2)}')
        for t in range(8):
            a(f'ds_add_f32 v{U + 6}, v{f[t]} offset:{(t >> 2) * 512 + (t & 3) * 4}')
        a("""s_mov_b64 exec, -1
        s_waitcnt lgkmcnt(0)""")
    a(f"""s_add_u32 s13, s13, 192
    s_sub_u32 s14, s14, 16
    s_branch K2_FB_BATCH
    K2_FB_NEXT:
    s_add_u32 s12, s12, 1
    s_cmp_lt_u32 s12, 8
    s_cbranch_scc1 K2_FB_SEG
    s_mov_b32 s9, 1
    s_branch K2_STREAM_DONE
    K2_FB_FIN:
    v_lshlrev_b32 v40, 5, v0
    v_add_u32 v40, {ACB}, v40
    v_add_u32 v41, 0x10000, v40
    s_waitcnt lgkmcnt(0)
    s_barrier
    ds_read_b128 v[80:83], v40
    ds_read_b128 v[84:87], v40 offset:16
    ds_read_b128 v[88:91], v40 offset:32768
    ds_read_b128 v[92:95], v40 offset:32784
    ds_read_b128 v[96:99], v41
    ds_read_b128 v[100:103], v41 offset:16
    s_waitcnt lgkmcnt(0)""")
    for x in range(12):
        a(f'v_cvt_pk_bf16_f32 v{OBR + x}, v{80 + 2 * x}, v{81 + 2 * x}')
    a('s_branch K2_EPI')
    a("""K2_END:
    s_endpgm""")
    return a


def kernel_text(name, a):
    n = a.fix_hazards()
    nv, ns = a.max_regs()
    nv4 = (nv + 3) // 4 * 4
    body = f'.globl {name}\n.p2align 8\n.type {name},@function\n{name}:\n' + a.text()
    desc = f'''.p2align 6
.amdhsa_kernel {name}
  .amdhsa_next_free_vgpr {nv4}
  .amdhsa_next_free_sgpr {max(ns, 16)}
  .amdhsa_accum_offset {nv4}
  .amdhsa_group_segment_fixed_size 0
  .amdhsa_kernarg_size 88
  .amdhsa_user_sgpr_count 2
  .amdhsa_user_sgpr_kernarg_segment_ptr 1
  .amdhsa_system_sgpr_workgroup_id_x 1
  .amdhsa_float_denorm_mode_32 3
.end_amdhsa_kernel
'''
    print(f'{name}: vgpr {nv} sgpr {ns} nops inserted {n} instrs {sum(1 for k, _ in a.items if k == "i")}'
          f' bankconf {OPT.get("_bankconf", 0)}', file=sys.stderr)
    return body, desc


def main(out):
    hdr = open('cdna_kernels/' + NAME + '.s.ref').read().split('; Override launch')[0]
    launches = [
        f'; @launch kernel=painn_pre_kernel grid=({NK1},1,1) block=(1024,1,1) lds={K1_LDS}',
        f'; @launch kernel=painn_main_kernel grid=(256,1,1) block=(1024,1,1) lds={L_TOTAL}',
    ]
    b1, d1 = kernel_text('painn_pre_kernel', gen_k1())
    b2, d2 = kernel_text('painn_main_kernel', gen_k2())
    txt = hdr + '\n'.join(launches) + '\n.amdgcn_target "amdgcn-amd-amdhsa--gfx950"\n.text\n' + b1 + b2
    txt += '.fill 3072, 4, 0xbf810000\n' if OPT.get('cpf') else ''
    txt += '.section .rodata,"a"\n' + d1 + d2
    open(out, 'w').write(txt)


if __name__ == '__main__':
    for kv in sys.argv[2:]:
        k, v = kv.split('=', 1)
        OPT[k] = int(v) if v.lstrip('-').isdigit() else v
    main(sys.argv[1] if len(sys.argv) > 1 else 'v6.s')
```

```python
import sys
from asmlib import Asm, vr, sr

N = 10000
E = 320000
NAME = 'standalone__molecular_angular_painn__graph'

TAB = N * 256
TABS_BASE = 4 * TAB
MISC_BASE = 5 * TAB
GT_OFF = 0
WRF_OFF = 65536
CNT_OFF = 77824
RECS_OFF = 98304
NCH = 64
CHUNK = 5120
CELL = 1536
OVF_OFF = RECS_OFF + 64 * NCH * CELL
MISC_SIZE = OVF_OFF + NCH * CHUNK * 12
BN = 157
SN = 40
DMIN = 0x38D2
GTOP = 0x40A1
NFAST = 1186

NG = 157
R_GEMM = NCH
R_GT = NCH + NG
R_WRF = R_GT + 8
NK1 = R_WRF + 1

G_FR1 = 0
G_FR2 = 32768
G_H = 131072
G_S = 147456
K1_LDS = 163840
B_POS = 0
B_HIST = 60416
B_STG = 61440
BCELL = 1552

L_G = 0
L_HIST = 38912
L_START = 39680
L_FLAG = 40448
L_WRF = 40960
L_OB = 47104
L_ZA = 88064
L_REC = 113280
L_TOTAL = 163840
RCAP = 6304 - 66

OPT = dict(st='sc1', out_store='nt', stream=1, prio=1, round_phi=0, k1ld='', k2ld='', warm=2, d16=0, w2e=3, vmain=1, pollw=0, hl='sc1', skew=2, eld='nt')
DBG_BASE = 32 << 20
MASK = '0xffff0000'


def stamp(a, idx, vreg, real=False):
    if not OPT.get('stamps'):
        return
    a(f'''{'s_memrealtime' if real else 's_memtime'} s[92:93]
    s_waitcnt lgkmcnt(0)
    v_writelane_b32 v{vreg}, s92, {idx}''')


def stamp_out(a, vreg, wave_s, kidx, nw):
    if not OPT.get('stamps'):
        return
    a('s_waitcnt vmcnt(0)')
    stamp(a, 8, vreg)
    stamp(a, 9, vreg, True)
    a(f'''s_mov_b64 exec, -1
    s_add_u32 s96, s24, {DBG_BASE + kidx * (4 << 20)}
    s_addc_u32 s97, s25, 0
    s_mov_b32 s98, {4 << 20}
    s_mov_b32 s99, 0x00020000
    s_mul_i32 s100, s2, {nw}
    s_add_u32 s100, s100, {wave_s}
    s_lshl_b32 s100, s100, 8
    v_and_b32 v1, 63, v0
    v_lshlrev_b32 v1, 2, v1
    buffer_store_dword v{vreg}, v1, s[96:99], s100 offen''')


def stamp_mid(a, vreg, wave_s):
    if not OPT.get('stamps'):
        return
    stamp(a, 8, vreg)
    stamp(a, 9, vreg, True)
    a(f"""s_mov_b64 exec, -1
    s_add_u32 s96, s24, {DBG_BASE}
    s_addc_u32 s97, s25, 0
    s_mov_b32 s98, {4 << 20}
    s_mov_b32 s99, 0x00020000
    s_mul_i32 s100, s2, 16
    s_add_u32 s100, s100, {wave_s}
    s_lshl_b32 s100, s100, 8
    v_lshlrev_b32 v4, 2, v1
    buffer_store_dword v{vreg}, v4, s[96:99], s100 offen""")


def srd(a, d, lo, hi, size):
    a(f'''s_mov_b32 s{d}, {lo}
    s_mov_b32 s{d+1}, {hi}
    s_mov_b32 s{d+2}, {size}
    s_mov_b32 s{d+3}, 0x00020000''')


def srd_ws(a, d, off, size):
    a(f'''s_add_u32 s{d}, s24, {off}
    s_addc_u32 s{d+1}, s25, 0
    s_mov_b32 s{d+2}, {size}
    s_mov_b32 s{d+3}, 0x00020000''')


def bf16_round_pair(a, x, y, tmp):
    a(f'''v_cvt_pk_bf16_f32 v{tmp}, v{x}, v{y}
    v_lshlrev_b32 v{x}, 16, v{tmp}
    v_and_b32 v{y}, {MASK}, v{tmp}''')


def bf16_round1(a, x):
    a(f'''v_cvt_pk_bf16_f32 v{x}, v{x}, v{x}
    v_and_b32 v{x}, {MASK}, v{x}''')


def scan64(a, v):
    for sh in (1, 2, 4, 8):
        a(f'v_add_u32_dpp v{v}, v{v}, v{v} row_shr:{sh} row_mask:0xf bank_mask:0xf bound_ctrl:0')
    a(f'v_add_u32_dpp v{v}, v{v}, v{v} row_bcast:15 row_mask:0xa bank_mask:0xf')
    a(f'v_add_u32_dpp v{v}, v{v}, v{v} row_bcast:31 row_mask:0xc bank_mask:0xf')


def gen_k1(a):
    st = OPT['st']
    ld = OPT['k1ld']
    eld = OPT['eld']
    SV = 127
    a(f'''
    s_cmp_ge_u32 s2, 256
    s_cbranch_scc1 K2_END
    s_setprio 0
    s_load_dwordx16 s[8:23], s[0:1], 0
    s_load_dwordx2 s[24:25], s[0:1], 80
    s_load_dwordx2 s[94:95], s[0:1], 72
    v_lshrrev_b32 v4, 6, v0
    v_and_b32 v1, 63, v0
    v_readfirstlane_b32 s26, v4
    v_lshrrev_b32 v2, 4, v1
    v_and_b32 v3, 15, v1
    s_mov_b32 s54, 0x05040100
    s_mov_b32 s55, 0x07060302
    s_cmp_ge_u32 s2, {NK1}
    s_cbranch_scc1 K2_MAIN
    s_cmp_ge_u32 s2, {R_GT}
    s_cbranch_scc1 K1_MISC
    s_cmp_lt_u32 s2, {R_GEMM}
    s_cbranch_scc1 K1_BIN
    ''')
    SF = 16
    W1R, PO1, AC1 = 32, 48, 64
    W2R, PO2 = 32, 80
    FB = 80
    AC = 32
    TM = 64
    VV = 112
    VE = 3
    a(f'''
    s_and_b32 s27, s26, 3
    s_bfe_u32 s28, s26, 0x10002
    s_lshr_b32 s58, s26, 3
    s_sub_u32 s29, s2, {R_GEMM}
    s_lshl_b32 s29, s29, 2
    s_add_u32 s29, s29, s27
    s_lshl_b32 s30, s29, 4
    v_lshlrev_b32 v6, 4, v3
    v_lshl_add_u32 v9, v2, 2, s30
    s_sub_u32 s3, s2, {R_GEMM}
    s_lshl_b32 s3, s3, 4
    s_add_u32 s3, s3, s26
    s_lshl_b32 s3, s3, 12
    v_lshl_add_u32 v10, v2, 10, v6
    v_add_u32 v10, s3, v10
    v_lshrrev_b32 v11, 3, v3
    v_mul_u32_u24 v11, 0x1010, v11
    v_lshl_add_u32 v11, v2, 8, v11
    v_and_b32 v12, 7, v3
    v_lshl_add_u32 v11, v12, 5, v11
    s_mov_b32 s34, {N * 1024}
    s_mov_b32 s35, 0x00020000
    s_cmp_lg_u32 s58, 0
    s_cbranch_scc1 K1_HELP
    s_lshl_b32 s31, s28, 3
    v_add_u32 v5, s31, v2
    v_xor_b32 v7, v5, v3
    v_add_u32 v5, s30, v5
    v_lshlrev_b32 v5, 10, v5
    v_lshl_add_u32 v5, v7, 4, v5
    v_xor_b32 v8, 64, v5
    v_add_u32 v8, 0x1000, v8
    s_lshl_b32 s56, s27, 12
    s_lshl_b32 s3, s28, 11
    s_add_u32 s56, s56, s3
    s_add_u32 s56, s56, {G_S}
    s_add_u32 s57, s56, 1024
    v_lshl_add_u32 v7, v2, 11, v6
    s_lshr_b32 s48, s26, 1
    s_lshl_b32 s48, s48, 13
    s_and_b32 s3, s26, 1
    s_lshl_b32 s4, s3, 10
    s_add_u32 s49, s48, s4
    s_lshl_b32 s3, s3, 3
    s_add_u32 s48, s48, s3
    v_add_u32 v12, s48, v11
    s_mov_b32 s38, 32768
    s_mov_b32 s39, 0x00020000
    s_mov_b32 m0, s56
    s_waitcnt lgkmcnt(0)
    ''')
    stamp(a, 0, SV, True)
    stamp(a, 1, SV)
    a('''s_mov_b32 s32, s8
    s_mov_b32 s33, s9
    s_mov_b32 s36, s18
    s_mov_b32 s37, s19''')
    for ii in range(4):
        a(f'buffer_load_dwordx4 {vr(W1R + 4 * ii, 4)}, v7, s[36:39], s49 offen offset:{ii * 256}')
    a(f'''buffer_load_dwordx4 v5, s[32:35], 0 offen {ld} lds
    s_mov_b32 m0, s57
    s_nop 0
    buffer_load_dwordx4 v8, s[32:35], 0 offen {ld} lds''')
    def vload():
        for kk in range(3):
            a(f'buffer_load_dwordx4 {vr(VV + 4 * kk, 4)}, v10, s[32:35], 0 offen offset:{(1 + kk) * 256} {ld}')

    def half_unit(raw, po, addr, tmp):
        a(f'v_xor_b32 v{tmp}, 16, v{addr}')
        for t in range(8):
            c, pa = divmod(t, 2)
            sel = 's55' if pa else 's54'
            a(f'''v_perm_b32 v{po + 2 * t}, v{raw + 4 + c}, v{raw + c}, {sel}
            v_perm_b32 v{po + 2 * t + 1}, v{raw + 12 + c}, v{raw + 8 + c}, {sel}
            ds_write_b64 v{addr if t < 4 else tmp}, {vr(po + 2 * t, 2)} offset:{(t & 3) * 1024}''')

    def common_addr():
        a(f'''
        v_lshlrev_b32 v11, 4, v1
        s_mul_i32 s3, s28, 0x1010
        v_xor_b32 v4, s3, v11
        s_lshl_b32 s3, s27, 12
        s_add_u32 s3, s3, {G_H}
        v_add_u32 v5, s3, v11
        v_lshrrev_b32 v13, 3, v3
        s_mov_b32 s3, {TAB}
        v_mul_lo_u32 v8, v13, s3
        v_and_b32 v12, 7, v3
        v_lshlrev_b32 v12, 4, v12
        v_lshl_add_u32 v12, v9, 8, v12
        s_mul_i32 s3, s28, {2 * TAB}
        s_lshl_b32 s4, s58, 7
        s_add_u32 s3, s3, s4
        v_add3_u32 v8, v8, v12, s3
        s_lshl_b32 s3, s28, 7
        s_add_u32 s3, s3, {TABS_BASE}
        v_lshlrev_b32 v13, 8, v13
        v_add3_u32 v9, v12, v13, s3
        s_lshl_b32 s3, s58, 11
        s_add_u32 s4, s3, {G_FR2}
        v_add_u32 v12, s4, v4
        v_add_u32 v13, 0xc000, v12
        ''')
        srd_ws(a, 44, 0, 5 * TAB)

    vm_ = OPT['vmain']
    if vm_ == 0:
        vload()
    a(f'''
    s_lshl_b32 s3, s27, 12
    s_add_u32 s4, s3, {G_S}
    v_xor_b32 v124, v2, v3
    v_lshlrev_b32 v124, 4, v124
    v_lshl_add_u32 v124, v3, 8, v124
    v_add_u32 v124, s4, v124
    v_xor_b32 v125, 64, v124
    v_xor_b32 v126, 0x80, v124
    v_xor_b32 v15, 0xc0, v124
    s_add_u32 s3, s3, {G_H}
    s_lshl_b32 s4, s28, 11
    s_add_u32 s3, s3, s4
    v_lshl_add_u32 v7, v2, 9, v6
    v_add_u32 v7, s3, v7
    v_mov_b32 v14, v12
    ''')
    common_addr()
    a(f's_waitcnt vmcnt({2 + (VE if vm_ == 0 else 0)})')
    stamp(a, 2, SV)
    half_unit(W1R, PO1, 14, 11)
    a(f'''s_waitcnt vmcnt({VE if vm_ == 0 else 0}) lgkmcnt(0)
    s_barrier''')
    for u, ad in enumerate((124, 125, 126, 15)):
        a(f'ds_read_b128 {vr(SF + 4 * u, 4)}, v{ad}')
    order = [(u, tt) for u in range(4) for tt in range(4)]
    for n, (u, tt) in enumerate(order[:8]):
        a(f'ds_read_b128 {vr(FB + 4 * n, 4)}, v4 offset:{(u * 8 + tt) * 1024}')
    for n, (u, tt) in enumerate(order):
        a(f's_waitcnt lgkmcnt({min(7, 15 - n)})')
        d = AC1 + 4 * tt
        c = '0' if u == 0 else vr(d, 4)
        a(f'v_mfma_f32_16x16x32_bf16 {vr(d, 4)}, {vr(FB + 4 * (n & 7), 4)}, {vr(SF + 4 * u, 4)}, {c}')
        if n + 8 < 16:
            u2, t2 = order[n + 8]
            a(f'ds_read_b128 {vr(FB + 4 * (n & 7), 4)}, v4 offset:{(u2 * 8 + t2) * 1024}')
    stamp(a, 3, SV)
    if vm_ == 1:
        vload()
    for r in range(4):
        for p in range(2):
            xe, xo = AC1 + 4 * (2 * p) + r, AC1 + 4 * (2 * p + 1) + r
            t1, t2 = PO1 + 1 + 2 * p, PO1 + 2 + 2 * p
            bf16_round_pair(a, xe, xo, PO1)
            a(f'''v_mul_f32 v{t1}, 0xbfb8aa3b, v{xe}
            v_mul_f32 v{t2}, 0xbfb8aa3b, v{xo}
            v_exp_f32 v{t1}, v{t1}
            v_exp_f32 v{t2}, v{t2}
            v_add_f32 v{t1}, 1.0, v{t1}
            v_add_f32 v{t2}, 1.0, v{t2}
            v_rcp_f32 v{t1}, v{t1}
            v_rcp_f32 v{t2}, v{t2}
            v_mul_f32 v{t1}, v{t1}, v{xe}
            v_mul_f32 v{t2}, v{t2}, v{xo}
            v_cvt_pk_bf16_f32 v{W1R + 2 * r + p}, v{t1}, v{t2}''')
        if r & 1:
            a(f'ds_write_b128 v7, {vr(W1R + 2 * (r - 1), 4)} offset:{(r >> 1) * 256}')
    a('s_branch K1_G2')
    a(f'''K1_HELP:
    v_mul_u32_u24 v14, 6144, v2
    v_add_u32 v14, v14, v6
    s_mov_b32 s42, 98304
    s_mov_b32 s43, 0x00020000
    s_sub_u32 s7, s26, 8
    ''')
    for x in range(3):
        a(f'''s_mul_i32 s3, s7, 3
        s_add_u32 s3, s3, {x}
        s_lshr_b32 s4, s3, 1
        s_and_b32 s3, s3, 1
        s_mul_i32 s5, s4, 43
        s_lshr_b32 s5, s5, 7
        s_mul_i32 s6, s5, 3
        s_sub_u32 s6, s4, s6
        s_mul_i32 s5, s5, 24576
        s_lshl_b32 s6, s6, 8
        s_add_u32 s5, s5, s6
        s_mul_i32 s6, s3, 3072
        s_add_u32 s{50 + x}, s5, s6
        s_lshl_b32 s4, s4, 13
        s_lshl_b32 s3, s3, 3
        s_add_u32 s4, s4, s3
        s_add_u32 s4, s4, {G_FR2}
        v_add_u32 v{124 + x}, s4, v11''')
    a('s_waitcnt lgkmcnt(0)')
    stamp(a, 0, SV, True)
    stamp(a, 1, SV)
    a('''s_mov_b32 s32, s8
    s_mov_b32 s33, s9
    s_mov_b32 s40, s20
    s_mov_b32 s41, s21''')
    def w2load(x):
        for ii in range(4):
            a(f'buffer_load_dwordx4 {vr(W2R + 16 * x + 4 * ii, 4)}, v14, s[40:43], s{50 + x} offen offset:{ii * 768}')
    W2E = OPT['w2e']
    if W2E < 3:
        a("""s_sub_u32 s3, s2, 64
        s_lshr_b32 s3, s3, 3
        s_lshl_b32 s3, s3, 3
        s_add_u32 s3, s3, s7
        s_lshl_b32 s3, s3, 10
        v_lshlrev_b32 v15, 7, v1
        s_mov_b64 exec, 0xff
        buffer_load_dword v7, v15, s[40:43], s3 offen
        s_mov_b64 exec, -1""")
    for x in range(W2E):
        w2load(x)
    common_addr()
    stamp(a, 2, SV)
    a('s_barrier')
    for x in range(W2E, 3):
        w2load(x)
    VH = 3
    vload()
    for x in range(3):
        a(f's_waitcnt vmcnt({8 - 4 * x + VH})')
        half_unit(W2R + 16 * x, PO2 + 16 * (x & 1), 124 + x, 15)
    stamp(a, 3, SV)
    a(f'''K1_G2:
    v_lshlrev_b32 v10, 4, v0
    v_add_u32 v14, {G_S}, v10
    s_lshl_b32 s3, s27, 12
    s_lshl_b32 s4, s28, 7
    s_add_u32 s3, s3, s4
    s_lshl_b32 s4, s58, 2
    s_add_u32 s3, s3, s4
    v_lshlrev_b32 v7, 3, v3
    v_lshl_add_u32 v7, v2, 10, v7
    v_add_u32 v7, s3, v7
    v_add_u32 v15, {G_S}, v7
    s_cmp_ge_u32 s29, 625
    s_cselect_b32 s46, 0, s46
    s_waitcnt lgkmcnt(0)
    s_barrier
    ''')
    stamp(a, 4, SV)
    for u in range(4):
        a(f'ds_read_b128 {vr(SF + 4 * u, 4)}, v5 offset:{u * 1024}')

    def encode4(fields, out):
        if not OPT['stream']:
            for x in range(2):
                a(f'v_cvt_pk_bf16_f32 v{out + x}, v{fields[2 * x]}, v{fields[2 * x + 1]}')
            return
        for f in fields:
            a(f'v_add_u32 v{f}, 0x8000, v{f}')
        for x in range(1, 4):
            a(f'v_sub_u32_sdwa v{fields[x]}, v{fields[x]}, v{fields[x - 1]} dst_sel:DWORD dst_unused:UNUSED_PAD '
              f'src0_sel:DWORD src1_sel:WORD_1')
        for x in range(2):
            a(f'v_perm_b32 v{out + x}, v{fields[2 * x + 1]}, v{fields[2 * x]}, s55')

    def gemm2(items):
        def rd(n):
            u, ty, tt, d = items[n]
            a(f'ds_read_b128 {vr(FB + 4 * (n & 7), 4)}, v{12 if u < 2 else 13} '
              f'offset:{(((u & 1) * 3 + ty) * 8 + tt) * 1024}')
        for n in range(8):
            rd(n)
        for n, (u, ty, tt, d) in enumerate(items):
            a(f's_waitcnt lgkmcnt({min(7, len(items) - 1 - n)})')
            c = '0' if u == 0 else vr(d, 4)
            a(f'v_mfma_f32_16x16x32_bf16 {vr(d, 4)}, {vr(SF + 4 * u, 4)}, {vr(FB + 4 * (n & 7), 4)}, {c}')
            if n + 8 < len(items):
                rd(n + 8)

    def vwrite():
        a(f"""s_waitcnt vmcnt(0)
        ds_write_b128 v10, {vr(VV, 4)}
        ds_write_b128 v10, {vr(VV + 4, 4)} offset:16384
        ds_write_b128 v14, {vr(VV + 8, 4)}""")

    a("""s_cmp_lg_u32 s58, 0
    s_cbranch_scc1 K1_G2V""")
    if vm_ == 0:
        vwrite()
    gemm2([(u, 0, tt, AC + 16 + 4 * tt) for u in range(4) for tt in range(4)])
    a('K1_G2V:')
    gemm2([(u, ty, tt, AC + ((ty - 1) * 2 + tt) * 4) for u in range(4) for ty in (1, 2) for tt in range(2)])
    if vm_ == 0:
        a("""s_cmp_eq_u32 s58, 0
        s_cbranch_scc1 K1_B3""")
    vwrite()
    a("""K1_B3:
    s_waitcnt lgkmcnt(0)""")
    stamp(a, 5, SV)
    a('s_barrier')
    for r in range(4):
        a(f"""ds_read2st64_b32 {vr(VV + 4 * r, 2)}, v7 offset0:{r} offset1:{64 + r}
        ds_read_b32 v{VV + 4 * r + 2}, v15 offset:{r * 256}""")
    stamp(a, 6, SV)
    a("""s_cmp_lg_u32 s58, 0
    s_cbranch_scc1 K1_EPIV""")
    for rp in range(2):
        o = TM + rp * 8
        for h in range(2):
            f = [AC + 16 + t * 4 + 2 * rp + h for t in range(4)]
            if OPT['stream']:
                for x in f:
                    a(f'v_add_f32 v{x}, 0x00800000, v{x}')
            encode4(f, o + 2 * h)
        a(f"""v_mov_b32 v{o + 4}, v{o}
        v_mov_b32 v{o + 5}, v{o + 1}
        v_mov_b32_dpp v{o}, v{o + 2} row_ror:8 row_mask:0xf bank_mask:0xc
        v_mov_b32_dpp v{o + 1}, v{o + 3} row_ror:8 row_mask:0xf bank_mask:0xc
        v_mov_b32_dpp v{o + 2}, v{o + 4} row_ror:8 row_mask:0xf bank_mask:0x3
        v_mov_b32_dpp v{o + 3}, v{o + 5} row_ror:8 row_mask:0xf bank_mask:0x3
        buffer_store_dwordx4 {vr(o, 4)}, v9, s[44:47], 0 offen offset:{rp * 512} {st}""")
    a('K1_EPIV:')
    for r in range(4):
        a(f's_waitcnt lgkmcnt({6 - 2 * r})')
        o = FB + r * 4
        t0 = FB + 16 + (r & 1) * 8
        fa, fb = AC + r, AC + 4 + r
        ra, rb = AC + 8 + r, AC + 12 + r
        if OPT['round_phi']:
            bf16_round_pair(a, fa, fb, 11)
        for k in range(3):
            sreg = VV + r * 4 + k
            a(f'''v_lshlrev_b32 v{t0 + 2 * k}, 16, v{sreg}
            v_and_b32 v{t0 + 2 * k + 1}, {MASK}, v{sreg}''')
        for k in range(3):
            if OPT['stream']:
                a(f'''v_fmaak_f32 v{t0 + 2 * k}, v{t0 + 2 * k}, v{fa}, 0x00800000
                v_fmaak_f32 v{t0 + 2 * k + 1}, v{t0 + 2 * k + 1}, v{fb}, 0x00800000''')
            else:
                a(f'''v_mul_f32 v{t0 + 2 * k}, v{t0 + 2 * k}, v{fa}
                v_mul_f32 v{t0 + 2 * k + 1}, v{t0 + 2 * k + 1}, v{fb}''')
        if OPT['stream']:
            a(f'''v_add_f32 v{ra}, 0x00800000, v{ra}
            v_add_f32 v{rb}, 0x00800000, v{rb}''')
        encode4([t0, t0 + 1, t0 + 2, t0 + 3], o)
        encode4([t0 + 4, t0 + 5, ra, rb], o + 2)
        a(f'buffer_store_dwordx4 {vr(o, 4)}, v8, s[44:47], 0 offen offset:{r * 256} {st}')
    a('K1_GEMM_END:')
    stamp(a, 7, SV)
    stamp_mid(a, SV, 's26')
    a('s_branch K2_MAIN')

    SRC, DST = 8, 16
    PP = 24
    RC = 56
    BK = 76
    T = 84
    a(f'''K1_BIN:
    s_lshl_b32 s48, s2, 7
    v_lshrrev_b32 v4, 3, v0
    v_lshlrev_b32 v4, 13, v4
    v_and_b32 v5, 7, v0
    v_lshl_add_u32 v4, v5, 4, v4
    v_add_u32 v4, s48, v4
    v_lshrrev_b32 v5, 5, v0
    v_lshlrev_b32 v5, 13, v5
    v_and_b32 v6, 31, v0
    v_lshl_add_u32 v5, v6, 2, v5
    s_add_u32 s3, s48, {128 * 8192}
    v_add_u32 v5, s3, v5
    v_lshlrev_b32 v7, 4, v1
    v_mov_b32 v22, 0
    v_lshlrev_b32 v23, 2, v0
    v_cmp_gt_u32 vcc, 80, v0
    s_mov_b64 exec, vcc
    ds_write_b32 v23, v22 offset:{B_HIST}
    s_mov_b64 exec, -1
    s_lshl_b32 s49, s26, 12
    s_mov_b32 m0, s49
    s_mov_b32 s30, {E * 4}
    s_mov_b32 s31, 0x00020000
    s_mov_b32 s34, {E * 4}
    s_mov_b32 s35, 0x00020000
    s_mov_b32 s38, {N * 6}
    s_mov_b32 s39, 0x00020000
    s_waitcnt lgkmcnt(0)
    ''')
    stamp(a, 0, SV, True)
    stamp(a, 1, SV)
    a(f'''s_mov_b32 s28, s12
    s_mov_b32 s29, s13
    s_mov_b32 s32, s14
    s_mov_b32 s33, s15
    s_mov_b32 s36, s10
    s_mov_b32 s37, s11
    buffer_load_dwordx4 {vr(SRC, 4)}, v4, s[28:31], 0 offen {eld}
    buffer_load_dwordx4 {vr(DST, 4)}, v4, s[32:35], 0 offen {eld}
    s_cmp_eq_u32 s26, 15
    s_cbranch_scc1 K1_BIN_POSDONE''')
    for x in range(4):
        if x == 3:
            a('''s_cmp_eq_u32 s26, 14
            s_cbranch_scc1 K1_BIN_POSDONE''')
        a(f'buffer_load_dwordx4 v7, s[36:39], s49 offen offset:{x * 1024} lds')
    a(f'''K1_BIN_POSDONE:
    buffer_load_dword v{SRC + 4}, v5, s[28:31], 0 offen {eld}
    buffer_load_dword v{DST + 4}, v5, s[32:35], 0 offen {eld}
    v_cmp_gt_u32 vcc, {E * 4}, v5
    s_mov_b64 s[86:87], vcc
    s_mov_b64 s[84:85], -1
    s_movk_i32 s51, 6679
    s_mov_b64 s[90:91], 0
    v_mov_b32 v23, 1
    v_mov_b32 v{T + 9}, {MASK}
    v_mov_b32 v{T + 16}, {BCELL // 4}
    v_mov_b32 v{T + 17}, {B_STG}
    ''')
    srd_ws(a, 40, MISC_BASE, MISC_SIZE)
    for x in range(15 if OPT['d16'] else 0):
        a(f'v_mov_b64 {vr(PP + 2 * x, 2)}, 0')
    a('''s_waitcnt vmcnt(2)
    s_barrier''')
    stamp(a, 2, SV)

    def posread(p):
        b = PP + p * 6
        if p == 4:
            a('s_waitcnt vmcnt(0)')
        if OPT['d16']:
            a(f'''v_mul_u32_u24 v{T}, 6, v{SRC + p}
            v_mul_u32_u24 v{T + 1}, 6, v{DST + p}''')
            for k in range(3):
                a(f'ds_read_u16_d16_hi v{b + k}, v{T} offset:{2 * k}')
                a(f'ds_read_u16_d16_hi v{b + 3 + k}, v{T + 1} offset:{2 * k}')
        else:
            a(f'''v_mul_u32_u24 v{b + 4}, 6, v{SRC + p}
            v_mul_u32_u24 v{b + 5}, 6, v{DST + p}
            v_and_b32 v{T}, -4, v{b + 4}
            v_and_b32 v{T + 1}, -4, v{b + 5}
            ds_read2_b32 {vr(b, 2)}, v{T} offset0:0 offset1:1
            ds_read2_b32 {vr(b + 2, 2)}, v{T + 1} offset0:0 offset1:1''')

    def posdiff(p, X):
        b = PP + p * 6
        if OPT['d16']:
            for k in range(3):
                a(f'v_sub_f32 v{X[k]}, v{b + k}, v{b + 3 + k}')
            return
        m = T + 9
        a(f'''v_alignbyte_b32 v{b}, v{b + 1}, v{b}, v{b + 4}
        v_alignbyte_b32 v{b + 2}, v{b + 3}, v{b + 2}, v{b + 5}
        v_alignbyte_b32 v{b + 1}, v{b + 1}, v{b + 1}, v{b + 4}
        v_alignbyte_b32 v{b + 3}, v{b + 3}, v{b + 3}, v{b + 5}
        v_lshlrev_b32 v{X[0]}, 16, v{b}
        v_lshlrev_b32 v{b + 4}, 16, v{b + 2}
        v_and_b32 v{X[1]}, v{m}, v{b}
        v_and_b32 v{b + 5}, v{m}, v{b + 2}
        v_lshlrev_b32 v{X[2]}, 16, v{b + 1}
        v_lshlrev_b32 v{b + 3}, 16, v{b + 3}
        v_sub_f32 v{X[0]}, v{X[0]}, v{b + 4}
        v_sub_f32 v{X[1]}, v{X[1]}, v{b + 5}
        v_sub_f32 v{X[2]}, v{X[2]}, v{b + 3}''')

    def stage(p):
        R = RC + 4 * p
        a(f'''v_min_u32 v{T}, 0x80, v{R + 3}
        v_mad_u32_u24 v{T + 1}, v{BK + p}, v{T + 16}, v{T + 17}
        v_mad_u32_u24 v{T}, v{T}, 12, v{T + 1}
        s_mov_b64 exec, {sr(60 + 2 * p, 2)}
        ds_write2_b32 v{T}, v{R}, v{R + 1} offset0:0 offset1:1
        ds_write_b32 v{T}, v{R + 2} offset:8
        s_mov_b64 exec, -1''')

    groups = [(0, 1), (2, 3), (4,)]
    posread(0); posread(1)
    for gi, P in enumerate(groups):
        nxt = groups[gi + 1] if gi + 1 < len(groups) else ()
        for p in nxt:
            posread(p)
        a(f's_waitcnt lgkmcnt({(6 if OPT["d16"] else 2) * len(nxt)})')
        X = [[T + 2, T + 3, T + 4], [T + 5, T + 6, T + 7]]
        Q = [[T + 10, T + 11, T + 12], [T + 13, T + 14, T + 15]]
        tmp = T + 8
        ne = len(P)
        E2 = range(ne)

        def rnd_scalar(regs):
            if ne == 2:
                bf16_round_pair(a, regs[0], regs[1], tmp)
            else:
                bf16_round1(a, regs[0])
        for e in E2:
            posdiff(P[e], X[e])
        if gi:
            for p in groups[gi - 1]:
                stage(p)
        for e in E2:
            bf16_round_pair(a, X[e][0], X[e][1], tmp)
        rnd_scalar([X[e][2] for e in E2])
        for e in E2:
            for k in range(3):
                a(f'v_mul_f32 v{Q[e][k]}, v{X[e][k]}, v{X[e][k]}')
        for e in E2:
            bf16_round_pair(a, Q[e][0], Q[e][1], tmp)
        rnd_scalar([Q[e][2] for e in E2])
        for e in E2:
            a(f'v_add_f32 v{Q[e][0]}, v{Q[e][0]}, v{Q[e][1]}')
        for e in E2:
            a(f'''v_add_f32 v{Q[e][0]}, v{Q[e][0]}, v{Q[e][2]}
            v_mul_u32_u24 v{BK + P[e]}, s51, v{DST + P[e]}''')
        rnd_scalar([Q[e][0] for e in E2])
        for e in E2:
            a(f'''v_add_f32 v{Q[e][0]}, 0x322bcc77, v{Q[e][0]}
            v_lshrrev_b32 v{BK + P[e]}, 18, v{BK + P[e]}''')
        rnd_scalar([Q[e][0] for e in E2])
        for e in E2:
            a(f'v_sqrt_f32 v{Q[e][0]}, v{Q[e][0]}')
        for e in E2:
            a(f'v_and_b32 v{BK + P[e]}, -4, v{BK + P[e]}')
        rnd_scalar([Q[e][0] for e in E2])
        vm = 84 if P[0] < 4 else 86
        for e in E2:
            a(f'''v_cmp_gt_f32 vcc, 0x40a00000, v{Q[e][0]}
            v_rcp_f32 v{Q[e][1]}, v{Q[e][0]}
            s_and_b64 {sr(60 + 2 * P[e], 2)}, vcc, {sr(vm, 2)}''')
        for e in E2:
            a(f'''s_mov_b64 exec, {sr(60 + 2 * P[e], 2)}
            ds_add_rtn_u32 v{RC + 4 * P[e] + 3}, v{BK + P[e]}, v23 offset:{B_HIST}''')
        for e in reversed(E2):
            p = P[e]
            R = RC + 4 * p
            x0, x1, x2 = X[e]
            q0, q1, q2 = Q[e]
            if e != ne - 1:
                a(f's_mov_b64 exec, {sr(60 + 2 * p, 2)}')
            a(f'''v_lshrrev_b32 v{q0}, 11, v{q0}
            v_sub_u32 v{q0}, {GTOP * 32}, v{q0}
            v_cmp_ne_u32 vcc, {1999 * 32}, v{q0}
            v_fmaak_f32 v{x0}, v{x0}, v{q1}, 0x00800000
            v_fmaak_f32 v{x1}, v{x1}, v{q1}, 0x00800000
            v_fmaak_f32 v{x2}, v{x2}, v{q1}, 0x00800000
            v_cndmask_b32 v{q0}, 32, v{q0}, vcc
            v_sub_u32 v{x0}, v{x0}, v{SRC + p}
            v_sub_u32 v{x2}, v{x2}, v{DST + p}
            v_sub_u32 v{x1}, v{x1}, v{q0}
            v_add_u32 v{x0}, 0x8000, v{x0}
            v_add_u32 v{x1}, 0x8000, v{x1}
            v_add_u32 v{x2}, 0x8000, v{x2}
            v_cmp_lt_u32 vcc, {NFAST * 32 - 1}, v{q0}
            v_and_or_b32 v{R}, v{x0}, v{T + 9}, v{SRC + p}
            v_and_or_b32 v{R + 1}, v{x1}, v{T + 9}, v{q0}
            v_and_or_b32 v{R + 2}, v{x2}, v{T + 9}, v{DST + p}
            s_or_b64 s[90:91], s[90:91], vcc''')
        a('s_mov_b64 exec, -1')
    stamp(a, 3, SV)
    a('s_waitcnt lgkmcnt(0)')
    stage(4)
    a(f'''
    v_mov_b32 v4, {B_HIST + 256}
    s_mov_b64 exec, s[90:91]
    ds_write_b32 v4, v23
    s_mov_b64 exec, -1
    v_lshlrev_b32 v6, 2, v1
    s_mul_i32 s3, s26, {4 * BCELL}
    s_add_u32 s3, s3, {B_STG}
    v_add_u32 v5, s3, v7
    s_mul_i32 s51, s26, {4 * NCH * CELL}
    s_mul_i32 s3, s2, {CELL}
    s_add_u32 s51, s51, s3
    s_add_u32 s51, s51, {RECS_OFF}
    s_waitcnt lgkmcnt(0)
    s_barrier
    ds_read_b32 v8, v6 offset:{B_HIST}
    ds_read_b32 v22, v4
    ''')
    stamp(a, 4, SV)
    a('s_mov_b32 exec_hi, 0xffff')
    for c in range(4):
        a(f'ds_read_b128 {vr(PP + 4 * c, 4)}, v5 offset:{c * BCELL}')
    for c in range(4):
        a(f'''s_waitcnt lgkmcnt({3 - c})
        buffer_store_dwordx4 {vr(PP + 4 * c, 4)}, v7, s[40:43], s51 offen {st}
        s_add_u32 s51, s51, {NCH * CELL}''')
    a(f'''
    s_mov_b64 exec, -1
    v_cmp_lt_u32 vcc, 64, v8
    s_lshl_b32 s3, s26, 2
    s_lshr_b64 s[56:57], vcc, s3
    s_and_b32 s56, s56, 15
    s_cbranch_scc0 K1_BIN_XD
    s_sub_u32 s51, s51, {4 * NCH * CELL}
    s_mov_b32 exec_hi, 0xffff
    ''')
    for c in range(4):
        a(f'''s_bitcmp1_b32 s56, {c}
        s_cbranch_scc0 K1_BIN_X{c}
        ds_read_b128 {vr(PP + 16 + 4 * c, 4)}, v5 offset:{c * BCELL + 768}
        s_waitcnt lgkmcnt(0)
        buffer_store_dwordx4 {vr(PP + 16 + 4 * c, 4)}, v7, s[40:43], s51 offen offset:768 {st}
        K1_BIN_X{c}:
        s_add_u32 s51, s51, {NCH * CELL}''')
    a(f'''
    s_mov_b64 exec, -1
    K1_BIN_XD:
    v_cmp_lt_u32 vcc, 0x80, v8
    s_cbranch_vccz K1_BIN_CNT
    s_mul_i32 s51, s2, {CHUNK * 12}
    s_add_u32 s51, s51, {OVF_OFF}
    ''')
    for p in range(5):
        R = RC + 4 * p
        a(f'''v_cmp_lt_u32 vcc, 0x7f, v{R + 3}
        s_and_b64 exec, vcc, {sr(60 + 2 * p, 2)}
        ds_add_rtn_u32 v{T}, v4, v23 offset:4
        s_waitcnt lgkmcnt(0)
        v_mul_u32_u24 v{T}, 12, v{T}
        buffer_store_dwordx3 {vr(R, 3)}, v{T}, s[40:43], s51 offen {st}
        s_mov_b64 exec, -1''')
    a(f'''
    s_barrier
    K1_BIN_CNT:
    s_cmp_lg_u32 s26, 15
    s_cbranch_scc1 K1_BIN_DONE
    ds_read_b32 v10, v4 offset:4
    s_lshl_b32 s50, s2, 8
    s_add_u32 s50, s50, {CNT_OFF}
    v_lshl_or_b32 v9, v22, 31, v8
    buffer_store_dword v9, v6, s[40:43], s50 offen {st}
    s_mov_b64 exec, 1
    s_lshl_b32 s50, s2, 2
    s_add_u32 s50, s50, {CNT_OFF + 64 * 256}
    s_waitcnt lgkmcnt(0)
    buffer_store_dword v10, v6, s[40:43], s50 offen {st}
    K1_BIN_DONE:''')
    stamp(a, 7, SV)
    stamp_mid(a, SV, 's26')
    a('s_branch K1_SIGNAL')

    a(f'''K1_MISC:
    s_cmp_ge_u32 s2, {R_WRF}
    s_cbranch_scc1 K1_WRF
    s_cmp_ge_u32 s26, 4
    s_cbranch_scc1 K1_SIGNAL
    s_sub_u32 s27, s2, {R_GT}
    s_lshl_b32 s27, s27, 8
    v_add_u32 v4, s27, v0
    v_sub_u32 v5, {GTOP}, v4
    v_mov_b32 v6, {DMIN}
    v_cmp_gt_u32 vcc, 2, v4
    v_cndmask_b32 v5, v5, v6, vcc
    s_waitcnt lgkmcnt(0)
    s_load_dwordx8 s[28:35], s[16:17], 0
    ''')
    srd_ws(a, 40, MISC_BASE + GT_OFF, 64000)
    a('''v_lshlrev_b32 v5, 16, v5
    v_rcp_f32 v6, v5
    v_mul_f32 v7, 0x40490fdb, v5''')
    bf16_round1(a, 7)
    a('v_mul_f32 v7, 0x3e4ccccd, v7')
    bf16_round1(a, 7)
    a('''v_mul_f32 v7, 0x3e22f983, v7
    v_cos_f32 v7, v7''')
    bf16_round1(a, 7)
    a('v_add_f32 v7, 1.0, v7')
    bf16_round1(a, 7)
    a('''v_mul_f32 v7, 0.5, v7
    v_cmp_ne_u32 vcc, 0, v4
    v_cndmask_b32 v7, 0, v7, vcc
    s_waitcnt lgkmcnt(0)''')
    for k2 in range(8):
        a(f'''s_lshl_b32 s36, s{28 + k2}, 16
        s_and_b32 s37, s{28 + k2}, 0xffff0000
        v_mul_f32 v8, s36, v5
        v_mul_f32 v9, s37, v5''')
        bf16_round_pair(a, 8, 9, 10)
        a('''v_mul_f32 v8, 0x3e22f983, v8
        v_mul_f32 v9, 0x3e22f983, v9
        v_rndne_f32 v10, v8
        v_rndne_f32 v11, v9
        v_sub_f32 v8, v8, v10
        v_sub_f32 v9, v9, v11
        v_sin_f32 v8, v8
        v_sin_f32 v9, v9''')
        bf16_round_pair(a, 8, 9, 10)
        a('''v_mul_f32 v8, v8, v6
        v_mul_f32 v9, v9, v6''')
        bf16_round_pair(a, 8, 9, 10)
        a(f'''v_mul_f32 v8, v8, v7
        v_mul_f32 v9, v9, v7
        v_cvt_pk_bf16_f32 v{16 + k2}, v8, v9''')
    a(f'''v_lshlrev_b32 v4, 5, v4
    buffer_store_dwordx4 v[16:19], v4, s[40:43], 0 offen {st}
    buffer_store_dwordx4 v[20:23], v4, s[40:43], 0 offen offset:16 {st}
    s_branch K1_SIGNAL
    K1_WRF:
    s_waitcnt lgkmcnt(0)
    ''')
    srd(a, 28, 's22', 's23', 16 * 768)
    srd_ws(a, 40, MISC_BASE + WRF_OFF, 12288)
    a(f'''
    v_mul_u32_u24 v4, 3072, v2
    v_and_b32 v5, 7, v3
    v_lshl_add_u32 v4, v5, 3, v4
    v_lshrrev_b32 v6, 3, v3
    v_lshlrev_b32 v8, 4, v0
    s_cmp_lt_u32 s26, 8
    s_cbranch_scc0 K1_WRF_S
    s_and_b32 s3, s26, 1
    s_add_u32 s3, s3, 1
    s_lshl_b32 s3, s3, 8
    s_lshr_b32 s4, s26, 1
    s_lshl_b32 s4, s4, 6
    s_add_u32 s3, s3, s4
    v_lshl_add_u32 v4, v6, 2, v4
    s_branch K1_WRF_GO
    K1_WRF_S:
    s_and_b32 s3, s26, 1
    s_lshl_b32 s3, s3, 2
    s_and_b32 s4, s26, 2
    s_lshl_b32 s4, s4, 5
    s_add_u32 s3, s3, s4
    v_lshl_add_u32 v4, v6, 7, v4
    K1_WRF_GO:
    buffer_load_dword v12, v4, s[28:31], s3 offen
    buffer_load_dword v13, v4, s[28:31], s3 offen offset:768
    buffer_load_dword v14, v4, s[28:31], s3 offen offset:1536
    buffer_load_dword v15, v4, s[28:31], s3 offen offset:2304
    s_waitcnt vmcnt(0)
    v_perm_b32 v16, v13, v12, s54
    v_perm_b32 v17, v15, v14, s54
    v_perm_b32 v18, v13, v12, s55
    v_perm_b32 v19, v15, v14, s55
    buffer_store_dwordx4 v[16:19], v8, s[40:43], 0 offen {st}
    K1_SIGNAL:
    s_mov_b64 exec, -1
    s_waitcnt vmcnt(0) lgkmcnt(0)
    s_barrier
    s_cmp_lg_u32 s26, 0
    s_cbranch_scc1 K2_MAIN
    v_mov_b32 v4, 0
    v_mov_b32 v5, 1
    s_mov_b64 exec, 1
    global_atomic_add v4, v5, s[94:95] sc1
    s_mov_b64 exec, -1''')


def gen_k2(a):
    stream = OPT['stream']
    HL = OPT['hl']
    warm = OPT['warm']
    SV = 127
    D = 8
    W = 24
    BWV = 56
    BWS = 64
    A = 80
    GA = 82
    SR = 84
    RH = 88
    ACC = 96
    U = 104
    Z = 112
    cLM, cQ8, cOV, cOS = 116, 117, 118, 119
    aZ, aR1, aR2, aG = 120, 121, 122, 123
    aS, aGS = 124, 125
    c256, c1024 = 4, 5
    vMask = 6
    zV0, zS0 = 7, 83
    FVn, FSn = RH + 6, RH + 7
    CV = L_ZA
    CS = L_ZA + 24576
    STO = L_HIST
    SVR = [BWS, BWS + 4, BWS + 8]
    REC = 8
    HA = 44
    SQ = 84
    ZOFF = L_ZA - L_REC // 2
    BASE = L_REC // 8 + 1

    a(f'''
    K2_MAIN:
    s_mov_b64 exec, -1
    s_waitcnt lgkmcnt(0)
    s_load_dwordx2 s[44:45], s[0:1], 0
    s_load_dwordx2 s[48:49], s[0:1], 64
    v_lshrrev_b32 v4, 6, v0
    v_and_b32 v1, 63, v0
    v_readfirstlane_b32 s30, v4
    v_lshrrev_b32 v2, 4, v1
    v_and_b32 v3, 15, v1
    s_and_b32 s26, s2, 3
    s_lshr_b32 s27, s2, 3
    s_lshl_b32 s27, s27, 1
    s_bfe_u32 s3, s2, 0x10002
    s_add_u32 s27, s27, s3
    s_lshl_b32 s6, s27, 4
    s_add_u32 s6, s6, s30
    s_mul_i32 s7, s6, {4 * CELL}
    s_add_u32 s7, s7, {RECS_OFF}
    s_lshl_b32 s6, s30, 8
    s_add_u32 s6, s6, s27
    s_lshl_b32 s6, s6, 2
    s_add_u32 s6, s6, {MISC_BASE + CNT_OFF}
    s_add_u32 s8, s7, {2 * CELL}
    v_mul_u32_u24 v100, 12, v1
    s_mov_b32 s42, {MISC_SIZE}
    s_mov_b32 s43, 0x00020000
    v_lshlrev_b32 v5, 4, v0
    v_mov_b64 v[104:105], 0
    v_mov_b64 v[106:107], 0
    v_add_u32 v103, {L_OB}, v5
    v_cmp_gt_u32 vcc, {(L_WRF - L_HIST) // 16}, v0
    s_waitcnt lgkmcnt(0)
    s_cmp_lg_u32 s30, {OPT['pollw']}
    s_cbranch_scc1 K2_POLLA_ok
    v_mov_b32 v96, 0
    s_mov_b32 s3, 0x200000
    K2_POLLA:
    global_load_dword v97, v96, s[94:95] sc1
    s_waitcnt vmcnt(0)
    v_readfirstlane_b32 s4, v97
    s_cmp_ge_u32 s4, {NK1 - NG}
    s_cbranch_scc1 K2_POLLA_ok
    s_sleep 2
    s_sub_u32 s3, s3, 1
    s_cmp_lg_u32 s3, 0
    s_cbranch_scc1 K2_POLLA
    K2_POLLA_ok:
    s_barrier
    ''')
    stamp(a, 0, SV, True)
    stamp(a, 1, SV)
    a(f'''
    s_add_u32 s40, s24, {MISC_BASE}
    s_addc_u32 s41, s25, 0
    s_load_dword s12, s[24:25], s6
    s_load_dword s13, s[24:25], s6 offset:256
    s_load_dword s14, s[24:25], s6 offset:512
    s_load_dword s15, s[24:25], s6 offset:768
    buffer_load_dwordx3 {vr(REC, 3)}, v100, s[40:43], s7 offen {HL}
    buffer_load_dwordx3 {vr(REC + 4, 3)}, v100, s[40:43], s7 offen offset:{CELL} {HL}
    buffer_load_dwordx3 {vr(REC + 8, 3)}, v100, s[40:43], s8 offen {HL}
    buffer_load_dwordx3 {vr(REC + 12, 3)}, v100, s[40:43], s8 offen offset:{CELL} {HL}
    s_mov_b64 exec, vcc
    ds_write_b128 v5, v[104:107] offset:{L_HIST}
    s_mov_b64 exec, -1
    ds_write_b128 v103, v[104:107]
    ds_write_b128 v103, v[104:107] offset:16384
    ds_write_b128 v103, v[104:107] offset:32768
    s_mul_i32 s28, s27, {BN}
    s_mul_i32 s10, s27, {-4 * BN}
    s_sub_u32 s29, {N}, s28
    s_min_u32 s29, s29, {BN}
    s_mul_i32 s18, s26, {SN}
    s_min_u32 s18, s18, s29
    s_add_u32 s19, s18, {SN}
    s_min_u32 s19, s19, s29
    s_mov_b32 s46, {N * 1024}
    s_mov_b32 s47, 0x00020000
    s_mul_i32 s4, s26, {TAB}
    s_add_u32 s32, s24, s4
    s_addc_u32 s33, s25, 0
    s_mov_b32 s34, {TAB}
    s_mov_b32 s35, 0x00020000
    v_lshlrev_b32 v101, 4, v1
    v_mov_b32 v99, 1
    ''')

    def dma():
        a(f'''
        s_lshl_b32 s3, s30, 10
        s_add_u32 s4, s3, 0x4000
        s_mov_b32 m0, s3
        s_add_u32 s5, s3, 0x8000
        buffer_load_dwordx4 v101, s[40:43], s3 offen {HL} lds
        s_mov_b32 m0, s4
        s_lshl_b32 s6, s26, 11
        buffer_load_dwordx4 v101, s[40:43], s4 offen {HL} lds
        s_cmp_ge_u32 s30, 12
        s_cbranch_scc1 K2_DMA{dma.n}
        s_add_u32 s6, s6, {WRF_OFF - 6144}
        s_cmp_ge_u32 s30, 8
        s_cselect_b32 s6, {WRF_OFF}, s6
        s_add_u32 s6, s6, s3
        s_add_u32 s4, s3, {L_WRF - 6144}
        s_cmp_lt_u32 s30, 6
        s_cselect_b32 s4, s5, s4
        s_cselect_b32 s6, s5, s6
        s_mov_b32 m0, s4
        s_nop 0
        buffer_load_dwordx4 v101, s[40:43], s6 offen {HL} lds
        K2_DMA{dma.n}:
        ''')
        dma.n += 1
    dma.n = 0

    def touch():
        a(f'''s_lshr_b32 s3, s2, 3
        s_lshl_b32 s3, s3, 4
        s_add_u32 s3, s3, s30
        s_mul_i32 s3, s3, 5120
        v_lshlrev_b32 v98, 7, v1
        v_add_u32 v98, s3, v98
        s_mov_b32 exec_hi, 0xff
        buffer_load_dword v126, v98, s[32:35], 0 offen {HL}
        s_mov_b64 exec, -1''')

    if warm == 2:
        dma()
    a('s_waitcnt lgkmcnt(0)')
    stamp(a, 2, SV)
    a(f'''
    s_max_u32 s3, s12, s13
    s_max_u32 s4, s14, s15
    s_max_u32 s16, s3, s4
    s_mov_b32 s17, 0
    v_cmp_gt_u32 s[60:61], s12, v1
    v_cmp_gt_u32 s[62:63], s13, v1
    v_cmp_gt_u32 s[64:65], s14, v1
    v_cmp_gt_u32 s[66:67], s15, v1
    s_cmp_le_u32 s16, 64
    s_cbranch_scc1 K2_M_DONE
    v_mov_b32 v108, s12
    v_mov_b32 v109, s13
    v_mov_b32 v110, s14
    v_mov_b32 v111, s15
    s_mov_b32 s4, 0xffff0000
    s_mov_b32 s5, 0
    v_cndmask_b32 v108, v108, v109, s[4:5]
    s_mov_b32 s4, 0
    s_mov_b32 s5, 0xffff
    v_cndmask_b32 v108, v108, v110, s[4:5]
    s_mov_b32 s5, 0xffff0000
    v_cndmask_b32 v108, v108, v111, s[4:5]
    v_add_u32 v109, 64, v3
    v_cmp_gt_u32 s[68:69], v108, v109
    v_mul_u32_u24 v102, {CELL - 192}, v2
    v_add_u32 v102, v102, v100
    s_mov_b64 exec, s[68:69]
    buffer_load_dwordx3 {vr(REC + 16, 3)}, v102, s[40:43], s7 offen offset:768 {HL}
    s_mov_b64 exec, -1
    s_cmp_le_u32 s16, 80
    s_cbranch_scc1 K2_M_DONE
    s_cmp_le_u32 s16, 128
    s_cbranch_scc1 K2_M_X
    s_mov_b32 s17, 1
    s_mov_b32 s16, 0
    s_mov_b64 s[60:61], 0
    s_mov_b64 s[62:63], 0
    s_mov_b64 s[64:65], 0
    s_mov_b64 s[66:67], 0
    s_branch K2_M_DONE
    K2_M_X:
    v_add_u32 v109, 80, v1
    ''')
    for x in range(4):
        a(f'''v_cmp_gt_u32 {sr(70 + 2 * x, 2)}, s{12 + x}, v109
        s_mov_b64 exec, {sr(70 + 2 * x, 2)}
        buffer_load_dwordx3 {vr(REC + 20 + 4 * x, 3)}, v100, s[40:43], s{7 + x // 2} offen offset:{960 + (x & 1) * CELL} {HL}
        s_mov_b64 exec, -1''')
    a(f'''K2_M_DONE:
    s_barrier
    s_cmp_eq_u32 s17, 0
    s_cbranch_scc1 K2_NOFLAG
    v_mov_b32 v108, {L_FLAG}
    ds_write_b32 v108, v99
    K2_NOFLAG:
    s_waitcnt vmcnt(0)''')
    stamp(a, 3, SV)

    def for_records(fn, tag):
        for x in range(4):
            a(f's_mov_b64 exec, {sr(60 + 2 * x, 2)}')
            fn(x)
        a(f'''s_cmp_le_u32 s16, 64
        s_cbranch_scc1 {tag}
        s_mov_b64 exec, s[68:69]''')
        fn(4)
        a(f'''s_cmp_le_u32 s16, 80
        s_cbranch_scc1 {tag}''')
        for x in range(5, 9):
            a(f's_mov_b64 exec, {sr(60 + 2 * x, 2)}')
            fn(x)
        a(f'''{tag}:
        s_mov_b64 exec, -1''')

    def f_hist(x):
        R = REC + 4 * x
        a(f'''v_mad_u32_u16 v{HA + x}, v{R + 2}, 4, s10
        ds_add_rtn_u32 v{R + 3}, v{HA + x}, v99 offset:{L_HIST}''')
    for_records(f_hist, 'K2_H_DONE')
    sk = OPT['skew']

    def setup():
        if warm != 2:
            dma()
        a(f'''
        v_lshlrev_b32 v{cQ8}, 3, v2
        v_lshlrev_b32 v{cLM}, 4, v3
        v_and_b32 v104, 7, v3
        v_lshrrev_b32 v105, 3, v3
        v_lshlrev_b32 v104, 3, v104
        s_lshl_b32 s3, s28, 8
        s_sub_u32 s3, {L_OB + 64}, s3
        v_lshl_add_u32 v{cOV}, v105, 2, v104
        v_add_u32 v{cOV}, s3, v{cOV}
        v_lshl_add_u32 v{cOS}, v105, 9, v104
        v_add_u32 v{cOS}, {L_OB}, v{cOS}
        v_mov_b32 v{c256}, 0x100
        v_mov_b32 v{c1024}, 0x400
        v_mov_b32 v{vMask}, {MASK}
        v_lshrrev_b32 v106, 2, v3
        v_and_b32 v107, 3, v3
        v_lshlrev_b32 v107, 3, v107
        s_add_u32 s36, s24, {TABS_BASE}
        s_addc_u32 s37, s25, 0
        s_sub_u32 s20, s19, s18
        s_add_u32 s11, s28, s18
        v_mov_b32 v110, 0
        s_lshl_b32 s3, s18, 2
        v_writelane_b32 v110, s3, 1
        s_lshl_b32 s3, s29, 2
        v_mov_b32 v111, s3
        s_lshl_b32 s3, s19, 2
        v_writelane_b32 v111, s3, 1
        s_movk_i32 s3, {L_FLAG - L_START}
        v_writelane_b32 v111, s3, 2
        s_sub_u32 s3, 16, s30
        s_mul_i32 s3, s3, {sk}
        s_add_u32 s3, s3, 128
        s_mul_i32 s22, s3, s30
        s_add_u32 s4, s30, 1
        s_sub_u32 s3, s3, {sk}
        s_mul_i32 s23, s3, s4
        ''')

    a('''s_cmp_lg_u32 s30, 0
    s_cbranch_scc1 K2_SETUP''')
    setup()
    a(f'''
    v_mov_b32 v60, 0xffff
    v_mov_b32 v61, 0
    s_add_u32 s3, s28, 159
    v_mov_b32 v62, s3
    s_waitcnt lgkmcnt(0)
    s_barrier
    ds_read_b32 v56, v100 offset:{L_HIST}
    ds_read_b32 v57, v100 offset:{L_HIST + 4}
    ds_read_b32 v58, v100 offset:{L_HIST + 8}
    s_waitcnt lgkmcnt(0)
    v_add3_u32 v59, v56, v57, v58
    v_mov_b32 v96, v59
    ''')
    scan64(a, 96)
    a(f'''
    v_add_u32 v96, {BASE}, v96
    v_sub_u32 v93, v96, v59
    v_readlane_b32 s3, v96, 63
    v_add_u32 v94, v93, v56
    v_add_u32 v95, v94, v57
    ds_write_b32 v100, v93 offset:{L_START}
    ds_write_b32 v100, v94 offset:{L_START + 4}
    ds_write_b32 v100, v95 offset:{L_START + 8}
    s_cmp_gt_u32 s3, {OPT.get('rcap', RCAP) + BASE}
    s_cbranch_scc1 K2_NOSCAN
    v_add_u32 v93, s3, v1
    v_lshlrev_b32 v94, 3, v93
    v_lshlrev_b32 v95, 2, v93
    ds_write_b64 v94, v[60:61]
    ds_write_b32 v95, v62 offset:{ZOFF}
    v_mov_b32 v93, {L_ZA}
    ds_write_b32 v93, v60
    s_branch K2_NOSCAN
    K2_SETUP:
    s_waitcnt lgkmcnt(0)
    s_barrier
    s_cmp_lg_u32 s30, 1
    s_cbranch_scc1 K2_NOSIG
    s_sub_u32 s3, s2, {R_GEMM}
    s_cmp_ge_u32 s3, {NG}
    s_cbranch_scc1 K2_NOSIG
    v_mov_b32 v96, 128
    s_mov_b64 exec, 1
    global_atomic_add v96, v99, s[94:95] sc1
    s_mov_b64 exec, -1
    K2_NOSIG:''')
    setup()
    a('''
    K2_NOSCAN:
    s_waitcnt lgkmcnt(0)
    s_barrier
    ''')
    stamp(a, 4, SV)
    a(f'''ds_read_b32 v110, v110 offset:{L_START}
    ds_read_b32 v111, v111 offset:{L_START}''')

    def f_start(x):
        a(f'ds_read_b32 v{SQ + x}, v{HA + x} offset:{L_START}')
    for_records(f_start, 'K2_S1_DONE')
    a(f'''s_waitcnt lgkmcnt(0)
    v_readlane_b32 s17, v111, 0
    v_readlane_b32 s3, v111, 2
    v_sub_u32 v111, v111, v110
    v_add_u32 v111, 15, v111
    v_lshrrev_b32 v111, 4, v111
    s_cmp_gt_u32 s17, {OPT.get('rcap', RCAP) + BASE}
    s_cbranch_scc1 K2_FALLBACK
    s_cmp_lg_u32 s3, 0
    s_cbranch_scc1 K2_FALLBACK
    ''')

    def f_scatter(x):
        R = REC + 4 * x
        a(f'''v_add_lshl_u32 v{SQ + x}, v{SQ + x}, v{R + 3}, 2
        v_add_u32 v{HA + x}, v{SQ + x}, v{SQ + x}
        ds_write_b32 v{SQ + x}, v{R + 2} offset:{ZOFF}
        ds_write_b64 v{HA + x}, {vr(R, 2)}''')
    for_records(f_scatter, 'K2_S2_DONE')
    a(f'''
    v_mul_u32_u24 v108, s22, v111
    v_mul_u32_u24 v109, s23, v111
    v_lshrrev_b32 v108, 11, v108
    v_lshrrev_b32 v109, 11, v109
    v_sub_u32 v109, v109, v108
    v_lshl_add_u32 v108, v108, 4, v110
    v_lshlrev_b32 v108, 3, v108
    v_readlane_b32 s21, v109, 0
    v_readlane_b32 s23, v109, 1
    v_readlane_b32 s12, v108, 0
    v_readlane_b32 s13, v108, 1
    s_lshl_b32 s4, s21, 5
    s_lshl_b32 s5, s23, 5
    s_sub_u32 s13, s13, 32
    v_mul_u32_u24 v{aR1}, s4, v2
    v_mad_u32_u24 v{aG}, s4, v106, v107
    v_mul_u32_u24 v{aS}, s5, v2
    v_mad_u32_u24 v{aGS}, s5, v106, v107
    v_add_u32 v{aR1}, s12, v{aR1}
    v_add_u32 v{aG}, s12, v{aG}
    v_add_u32 v{aS}, s13, v{aS}
    v_add_u32 v{aGS}, s13, v{aGS}
    v_lshrrev_b32 v{zV0}, 1, v{aR1}
    v_lshrrev_b32 v{zS0}, 1, v{aS}
    s_lshl_b32 s12, s21, 4
    s_lshl_b32 s13, s23, 4
    s_cmp_gt_u32 s21, 1
    s_cbranch_scc0 K2_SHORT
    v_add_u32 v{aR2}, 32, v{aR1}
    v_add_u32 v{U + 5}, 32, v{aG}
    K2_SHORTRET:
    v_lshrrev_b32 v{aZ}, 1, v{aR1}
    s_mul_i32 s58, s21, 11
    s_lshr_b32 s59, s58, 5
    s_lshr_b32 s58, s58, 4
    s_max_u32 s58, s58, 2
    s_max_u32 s59, s59, 2
    s_mov_b32 s31, s21
    s_mov_b32 s9, 0
    s_mov_b64 s[52:53], -1
    s_mov_b64 s[54:55], 0
    s_mov_b64 s[56:57], 0
    s_cmp_lg_u32 s30, 0
    s_cbranch_scc1 K2_POLLB_ok
    v_mov_b32 v96, 128
    s_mov_b32 s3, 0x200000
    K2_POLLB:
    global_load_dword v97, v96, s[94:95] sc1
    s_waitcnt vmcnt(0)
    v_readfirstlane_b32 s4, v97
    s_cmp_ge_u32 s4, {NG}
    s_cbranch_scc1 K2_POLLB_ok
    s_sleep 2
    s_sub_u32 s3, s3, 1
    s_cmp_lg_u32 s3, 0
    s_cbranch_scc1 K2_POLLB
    K2_POLLB_ok:
    s_waitcnt vmcnt(0) lgkmcnt(0)
    s_barrier
    ''')
    deferred = [f'''K2_SHORT:
    v_add_u32 v{aR2}, 32, v{aS}
    v_add_u32 v{U + 5}, 32, v{aGS}
    s_cmp_eq_u32 s21, 1
    s_cbranch_scc1 K2_SHORTRET
    v_mov_b32 v{aR1}, v{aR2}
    v_mov_b32 v{aG}, v{U + 5}
    v_add_u32 v{aR2}, 32, v{aR2}
    v_add_u32 v{U + 5}, 32, v{U + 5}
    s_mov_b32 s32, s36
    s_mov_b32 s33, s37
    s_cmp_eq_u32 s23, 0
    s_cselect_b32 s34, 0, s34
    s_branch K2_SHORTRET''']
    stamp(a, 5, SV)

    def gather(r):
        a(f'''v_lshl_add_u32 v{U + 7}, v{SR + r}, 8, v{cLM}
        buffer_load_dwordx4 {vr(D + 4 * r, 4)}, v{U + 7}, s[32:35], 0 offen {HL}''')

    for r in range(4):
        a(f'ds_read_u16 v{SR + r}, v{aR1} offset:{8 * r}')
    a(f'ds_read_u16 v{GA}, v{aG} offset:4')
    for x in range(6):
        a(f'ds_read_b128 {vr(BWV + 4 * x, 4)}, v101 offset:{L_WRF + 1024 * x}')
    if OPT['prio']:
        a('s_setprio 3')
    a(f'''v_mov_b32 v{aG}, v{U + 5}
    s_waitcnt lgkmcnt(7)''')
    for r in range(4):
        gather(r)
    a(f'''s_waitcnt lgkmcnt(6)
    v_add_u32 v{GA}, v{GA}, v{cQ8}
    ds_read_b64 {vr(A, 2)}, v{GA}
    ds_read_u16 v{GA}, v{aG} offset:4''')
    for r in range(4):
        a(f'''ds_read_b64 {vr(RH + 2 * r, 2)}, v{aR1} offset:{8 * r}
        ds_read_b32 v{Z + r}, v{aZ} offset:{ZOFF + 4 * r}
        ds_read_u16 v{SR + r}, v{aR2} offset:{8 * r}''')
    a(f'''v_mov_b64 {vr(ACC, 2)}, 0
    v_mov_b64 {vr(ACC + 2, 2)}, 0
    v_mov_b64 {vr(ACC + 4, 2)}, 0
    v_mov_b64 {vr(ACC + 6, 2)}, 0
    s_cmp_eq_u32 s21, 0
    s_cbranch_scc1 K2_NOV
    ''')

    def top(nm, bw, lg, isv):
        a(f's_waitcnt lgkmcnt({lg})')
        for x in range(nm):
            a(f'v_mfma_f32_16x16x16_bf16 {vr(W + 4 * x, 4)}, {vr(A, 2)}, {vr(bw + 2 * x, 2)}, 0')
        a(f'''v_add_u32 v{GA}, v{GA}, v{cQ8}
        v_lshrrev_b32 v{aZ}, 1, v{aR2}
        ds_read_b64 {vr(A, 2)}, v{GA}''')
        if isv:
            a(f'''v_mov_b32 v{aR1}, v{aR2}
            s_cmp_eq_u32 s21, s31
            s_cbranch_scc1 K2_EVENT
            K2_EVRET:''')
        a(f'''v_add_u32 v{aG}, 32, v{aG}
        v_add_u32 v{aR2}, 32, v{aR2}
        ds_read_u16 v{GA}, v{aG} offset:4''')

    def unpack(r):
        d = D + 4 * r
        if stream:
            a(f'''v_lshlrev_b64 {vr(U, 2)}, 16, {vr(d, 2)}
            v_lshlrev_b64 {vr(U + 2, 2)}, 16, {vr(d + 2, 2)}''')
        else:
            for x in range(4):
                a(f'v_lshlrev_b32 v{U + x}, 16, v{d + x}')
            for x in range(4):
                a(f'v_and_b32 v{d + x}, v{vMask}, v{d + x}')
        return [U, d, U + 1, d + 1, U + 2, d + 2, U + 3, d + 3]

    def fmac(acc, x, y):
        if (acc & 1) == (x & 1) == (y & 1):
            OPT['_bankconf'] = OPT.get('_bankconf', 0) + 1
        a(f'v_fmac_f32 v{acc}, v{x}, v{y}')

    def pk(acc, x, y, sx=None, sy=None):
        def sel(reg, b):
            return (reg, 0, 1) if b is None else (reg & ~1, reg & 1, reg & 1)
        x0, xl, xh = sel(x, sx)
        y0, yl, yh = sel(y, sy)
        a(f'v_pk_fma_f32 {vr(acc, 2)}, {vr(x0, 2)}, {vr(y0, 2)}, {vr(acc, 2)} '
          f'op_sel:[{xl},{yl},0] op_sel_hi:[{xh},{yh},1]')

    vacc = [ACC + 0, ACC + 2, ACC + 1, ACC + 3, ACC + 4, ACC + 5]
    sacc = [ACC + 1, ACC + 3, ACC + 0, ACC + 2, ACC + 5, ACC + 7, ACC + 4, ACC + 6]

    def flush_body(kind, z):
        if kind == 'V':
            a(f'v_mad_u32_u16 v{U + 6}, v{z}, v{c256}, v{cOV}')
            for k in range(3):
                a(f'v_cvt_pk_bf16_f32 v{U + k}, v{vacc[2 * k]}, v{vacc[2 * k + 1]}')
            for k in range(3):
                a(f'v_mov_b64 {vr(ACC + 2 * k, 2)}, 0')
            a(f'''ds_write2_b32 v{U + 6}, v{U}, v{U + 1} offset0:0 offset1:16
            ds_write_b32 v{U + 6}, v{U + 2} offset:128''')
        else:
            a(f'v_subrev_u16 v{U + 6}, s11, v{z}')
            for m in range(4):
                a(f'v_cvt_pk_bf16_f32 v{U + m}, v{sacc[2 * m]}, v{sacc[2 * m + 1]}')
            a(f'''v_cmp_gt_u16 vcc, s20, v{U + 6}
            v_mad_u32_u16 v{U + 6}, v{U + 6}, v{c1024}, v{cOS}''')
            for k in range(4):
                a(f'v_mov_b64 {vr(ACC + 2 * k, 2)}, 0')
            a(f'''s_mov_b64 exec, vcc
            ds_write2_b64 v{U + 6}, {vr(U, 2)}, {vr(U + 2, 2)} offset0:0 offset1:32''')
        a('s_mov_b64 exec, -1')

    def flush(kind, r):
        L = f'K2_{kind}F{r}'
        if r == 3:
            a(f'''s_and_b64 vcc, vcc, s[52:53]
            s_cbranch_scc0 {L}''')
        else:
            a(f's_cbranch_vccz {L}')
        a('s_mov_b64 exec, vcc')
        flush_body(kind, Z + r)
        a(f'{L}:')

    def phase_end(kind):
        z0, ln, off, fin, fn, stat = (zV0, 's12', 0, 's[54:55]', FVn, zV0) if kind == 'V' else (zS0, 's13', 16, 's[56:57]', FSn, zS0)
        T = W
        a(f'''v_add_u32 v{T + 4}, {ZOFF + off - 4}, v{z0}
        v_add_u32 v{T + 5}, {ln}, v{T + 4}
        ds_read2_b32 {vr(T, 2)}, v{T + 4} offset0:0 offset1:1
        ds_read2_b32 {vr(T + 2, 2)}, v{T + 5} offset0:0 offset1:1
        s_waitcnt lgkmcnt(0)
        v_cmp_eq_u16 {fin}, v{T}, v{T + 1}
        v_cmp_eq_u16 s[4:5], v{T + 1}, v{T + 2}
        v_cmp_ne_u16 s[6:7], v{T + 2}, v{T + 3}
        v_mov_b32 v{fn}, v{T + 1}
        v_mov_b32 v{stat}, 1
        s_and_b64 s[4:5], s[4:5], {fin}
        s_andn2_b64 s[4:5], s[4:5], s[6:7]
        s_andn2_b64 {fin}, {fin}, s[4:5]
        v_cndmask_b32 v{stat}, v{stat}, 2, s[4:5]
        v_cndmask_b32 v{stat}, v{stat}, 0, s[6:7]
        s_mov_b64 exec, s[6:7]''')
        flush_body(kind, T + 2)
        if kind == 'V':
            for x in range(3):
                a(f'''v_mov_b64 {vr(RH + 2 * x, 2)}, {vr(ACC + 2 * x, 2)}
                v_mov_b64 {vr(ACC + 2 * x, 2)}, 0''')

    a('K2_VLOOP:')
    top(4, BWV, 12, True)
    for r in range(4):
        a(f's_waitcnt vmcnt(3) lgkmcnt({9 if r < 3 else 7})')
        f = unpack(r)
        w = lambda x: W + 4 * x + r
        h = RH + 2 * r
        ta, tb = U + 4, U + 5
        a(f'''v_mul_f32 v{tb}, v{f[7]}, v{w(3)}
        v_mul_f32 v{ta}, v{f[6]}, v{w(2)}''')
        fmac(vacc[5], f[5], w(1))
        fmac(vacc[4], f[4], w(0))
        pk(ACC + 2, f[1], w(1), sy=1)
        gather(r)
        a(f'v_cmp_ne_u16 vcc, v{Z + r}, v{Z + (r + 1) % 4}')
        pk(ACC, f[0], w(0), sy=1)
        pk(ACC + 4, ta, Z + r, sy=1)
        pk(ACC + 2, tb, h, sx=1)
        pk(ACC, ta, h, sx=1)
        flush('V', r)
        a(f'''ds_read_b64 {vr(h, 2)}, v{aR1} offset:{8 * r}
        ds_read_b32 v{Z + r}, v{aZ} offset:{ZOFF + 4 * r}
        ds_read_u16 v{SR + r}, v{aR2} offset:{8 * r}''')
    a('''s_sub_u32 s21, s21, 1
    s_cmp_lg_u32 s21, 0
    s_cbranch_scc1 K2_VLOOP''')
    phase_end('V')
    deferred.append(f'''K2_EVENT:
    s_cmp_gt_u32 s21, s58
    s_cselect_b32 s31, s58, s59
    s_cbranch_scc1 K2_EVRET
    {'s_setprio 2' if OPT['prio'] else ''}
    s_cmp_gt_u32 s21, s59
    s_cbranch_scc1 K2_EVRET
    {'s_setprio 1' if OPT['prio'] else ''}
    s_mov_b32 s31, 2
    s_cmp_gt_u32 s21, 2
    s_cbranch_scc1 K2_EVRET
    s_mov_b32 s31, 1
    s_cmp_eq_u32 s21, 2
    s_cbranch_scc0 K2_EV1
    v_mov_b32 v{aR2}, v{aS}
    v_mov_b32 v{aG}, v{aGS}
    s_branch K2_EVRET
    K2_EV1:
    s_mov_b32 s32, s36
    s_mov_b32 s33, s37
    s_mov_b64 s[52:53], 0
    s_cmp_eq_u32 s23, 0
    s_cselect_b32 s34, 0, s34
    s_branch K2_EVRET
    K2_NOV:
    v_mov_b32 v{zV0}, 3
    s_waitcnt lgkmcnt(0)
    s_branch K2_VDONE
    K2_NOS:
    v_mov_b32 v{zS0}, 3
    s_branch K2_STREAM_DONE''')
    a('''K2_VDONE:
    s_cmp_eq_u32 s23, 0
    s_cbranch_scc1 K2_NOS''')
    if OPT['prio']:
        a('s_setprio 0')
    a('K2_SLOOP:')
    top(8, BWS, 8, False)
    a('''s_sub_u32 s23, s23, 1
    s_cmp_eq_u32 s23, 0
    s_cselect_b32 s34, 0, s34
    s_cselect_b64 s[52:53], 0, -1''')
    for r in range(4):
        a(f's_waitcnt vmcnt(3) lgkmcnt({7 if r < 3 else 5})')
        f = unpack(r)
        for t in (1, 3, 5, 7):
            fmac(sacc[t], f[t], W + 4 * t + r)
        gather(r)
        a(f'v_cmp_ne_u16 vcc, v{Z + r}, v{Z + (r + 1) % 4}')
        for t in (0, 2, 4, 6):
            fmac(sacc[t], f[t], W + 4 * t + r)
        flush('S', r)
        a(f'''ds_read_b32 v{Z + r}, v{aZ} offset:{ZOFF + 4 * r}
        ds_read_u16 v{SR + r}, v{aR2} offset:{8 * r}''')
    a('''s_cmp_lg_u32 s23, 0
    s_cbranch_scc1 K2_SLOOP''')
    phase_end('S')

    OBR = 24
    a(f'''
    K2_STREAM_DONE:
    s_setprio 0
    s_lshl_b32 s3, s30, 2
    s_mov_b32 s50, {N * 1024}
    s_mov_b32 s51, 0x00020000
    s_add_u32 s4, s28, s3
    s_lshl_b32 s4, s4, 10
    s_lshl_b32 s5, s26, 6
    s_add_u32 s4, s4, s5
    s_add_u32 s5, s11, s30
    s_lshl_b32 s5, s5, 10
    s_lshl_b32 s6, s20, 2
    v_add_u32 v44, s3, v2
    v_and_b32 v45, 3, v1
    v_lshrrev_b32 v49, 2, v3
    v_lshlrev_b32 v45, 4, v45
    v_lshl_add_u32 v46, v2, 10, v45
    v_lshl_add_u32 v46, v49, 8, v46
    v_add_u32 v46, s4, v46
    v_lshl_add_u32 v47, v2, 6, v45
    v_add_u32 v47, s5, v47
    v_cmp_eq_u32 vcc, 0, v49
    v_mov_b32 v50, 0x10000
    v_mov_b32 v51, 0x4000
    v_mov_b32 v52, s29
    v_mov_b32 v53, s6
    v_cndmask_b32 v46, v46, v47, vcc
    v_cndmask_b32 v50, v50, v51, vcc
    v_cndmask_b32 v52, v52, v53, vcc
    v_sub_u32 v52, v52, v44
    v_add_u32 v47, v46, v50
    v_add_u32 v48, v47, v50
    v_cmp_lt_i32 s[80:81], 0, v52
    v_cmp_lt_i32 s[82:83], 64, v52
    v_cmp_lt_i32 vcc, 0x80, v52
    s_mov_b64 s[84:85], vcc
    v_lshlrev_b32 v43, 4, v0
    v_add_u32 v43, {L_OB}, v43
    ''')
    for it in range(3):
        a(f'''s_mov_b64 exec, {sr(80 + 2 * it, 2)}
        buffer_load_dwordx4 {vr(SVR[it], 4)}, v{46 + it}, s[44:47], 0 offen {OPT['k2ld']}''')
    a('''s_mov_b64 exec, -1
    s_cmp_lg_u32 s9, 0
    s_cbranch_scc1 K2_FB_FIN''')
    a(f'''
    v_lshlrev_b32 v40, 3, v0
    v_add_u32 v40, {CV}, v40
    v_lshrrev_b32 v41, 4, v0
    v_lshlrev_b32 v41, 2, v41
    ds_write2st64_b32 v41, v{zV0}, v{zS0} offset0:{STO // 256} offset1:{STO // 256 + 1}
    v_mad_u32_u16 v54, v{FVn}, v{c256}, v{cOV}
    v_subrev_u16 v55, s11, v{FSn}
    v_cmp_gt_u16 vcc, s20, v55
    s_and_b64 s[56:57], s[56:57], vcc
    v_mad_u32_u16 v55, v55, v{c1024}, v{cOS}
    ''')
    stamp(a, 6, SV)
    OV, OS = 76, 84
    SUMV, SUMS = 24, 32
    CRV, CRS = 56, 104
    a(f'''s_mov_b64 exec, s[54:55]
    ds_read2_b32 {vr(OV, 2)}, v54 offset0:0 offset1:16
    ds_read_b32 v{OV + 2}, v54 offset:128
    s_mov_b64 exec, s[56:57]
    s_waitcnt lgkmcnt(2)
    ds_read2_b64 {vr(OS, 4)}, v55 offset0:0 offset1:32
    s_mov_b64 exec, -1
    v_cmp_lt_u32 vcc, 15, v0
    s_and_b64 s[60:61], s[54:55], vcc
    s_and_b64 s[62:63], s[56:57], vcc
    s_waitcnt lgkmcnt(0)''')
    for acc, n, ob, sm in ((vacc, 3, OV, SUMV), (sacc, 4, OS, SUMS)):
        for m in range(n):
            a(f'''v_lshlrev_b32 v{sm + acc[2 * m] - ACC}, 16, v{ob + m}
            v_and_b32 v{sm + acc[2 * m + 1] - ACC}, v{vMask}, v{ob + m}''')
    a('s_barrier')
    for x in range(3):
        a(f'ds_write_b64 v40, {vr(RH + 2 * x, 2)} offset:{8192 * x}')
    for x in range(4):
        a(f'ds_write_b64 v40, {vr(ACC + 2 * x, 2)} offset:{24576 + 8192 * x}')
    a(f'''s_waitcnt lgkmcnt(0)
    s_barrier
    K2_FIN_loop:
    v_subrev_u32 v40, 0x80, v40
    v_add_u32 v41, -4, v41
    s_or_b64 exec, s[60:61], s[62:63]
    s_cbranch_execz K2_FIN_wr
    ds_read2st64_b32 v[80:81], v41 offset0:{STO // 256} offset1:{STO // 256 + 1}
    s_mov_b64 exec, s[60:61]''')
    for x in range(3):
        a(f'ds_read_b64 {vr(CRV + 2 * x, 2)}, v40 offset:{8192 * x}')
    a('s_mov_b64 exec, s[62:63]')
    for x in range(4):
        a(f'ds_read_b64 {vr(CRS + 2 * x, 2)}, v40 offset:{24576 + 8192 * x}')
    a('''s_mov_b64 exec, -1
    v_cmp_lt_i32 s[64:65], 0, v41
    s_waitcnt lgkmcnt(4)
    v_cmp_ne_u32 s[4:5], 3, v80
    v_cmp_ne_u32 s[6:7], 3, v81
    v_cmp_lt_u32 s[66:67], 1, v80
    v_cmp_lt_u32 s[68:69], 1, v81
    s_and_b64 exec, s[60:61], s[4:5]''')
    for x in range(3):
        a(f'v_pk_add_f32 {vr(SUMV + 2 * x, 2)}, {vr(SUMV + 2 * x, 2)}, {vr(CRV + 2 * x, 2)}')
    a('''s_and_b64 exec, s[62:63], s[6:7]
    s_waitcnt lgkmcnt(0)''')
    for x in range(4):
        a(f'v_pk_add_f32 {vr(SUMS + 2 * x, 2)}, {vr(SUMS + 2 * x, 2)}, {vr(CRS + 2 * x, 2)}')
    a('''s_mov_b64 exec, -1
    s_and_b64 s[66:67], s[66:67], s[64:65]
    s_and_b64 s[68:69], s[68:69], s[64:65]
    s_and_b64 s[60:61], s[60:61], s[66:67]
    s_and_b64 s[62:63], s[62:63], s[68:69]
    s_branch K2_FIN_loop
    K2_FIN_wr:
    s_mov_b64 exec, -1''')
    for acc, n, ob, sm in ((vacc, 3, OV, SUMV), (sacc, 4, OS, SUMS)):
        for m in range(n):
            a(f'v_cvt_pk_bf16_f32 v{ob + m}, v{sm + acc[2 * m] - ACC}, v{sm + acc[2 * m + 1] - ACC}')
    a(f'''s_mov_b64 exec, s[54:55]
    ds_write2_b32 v54, v{OV}, v{OV + 1} offset0:0 offset1:16
    ds_write_b32 v54, v{OV + 2} offset:128
    s_mov_b64 exec, s[56:57]
    ds_write2_b64 v55, {vr(OS, 2)}, {vr(OS + 2, 2)} offset0:0 offset1:32
    s_mov_b64 exec, -1
    s_waitcnt lgkmcnt(0)
    s_barrier
    ds_read_b128 {vr(OBR, 4)}, v43
    ds_read_b128 {vr(OBR + 4, 4)}, v43 offset:16384
    ds_read_b128 {vr(OBR + 8, 4)}, v43 offset:32768
    ''')
    stamp(a, 7, SV)
    a('K2_EPI:')
    for it in range(3):
        if it == 2:
            a('''s_cmp_ge_u32 s30, 8
            s_cbranch_scc1 K2_EPI_DONE''')
        a(f's_waitcnt vmcnt(2) lgkmcnt({2 - it})')
        for x in range(4):
            s, o = SVR[it] + x, OBR + it * 4 + x
            a(f'''v_lshlrev_b32 v{U}, 16, v{s}
            v_and_b32 v{U + 1}, v{vMask}, v{s}
            v_lshlrev_b32 v{U + 2}, 16, v{o}
            v_and_b32 v{U + 3}, v{vMask}, v{o}
            v_add_f32 v{U}, v{U}, v{U + 2}
            v_add_f32 v{U + 1}, v{U + 1}, v{U + 3}
            v_cvt_pk_bf16_f32 v{s}, v{U}, v{U + 1}''')
        a(f'''s_mov_b64 exec, {sr(80 + 2 * it, 2)}
        buffer_store_dwordx4 {vr(SVR[it], 4)}, v{46 + it}, s[48:51], 0 offen {OPT['out_store']}
        s_mov_b64 exec, -1''')
    a('K2_EPI_DONE:')
    stamp_out(a, SV, 's30', 1, 16)
    a('s_endpgm')
    for d in deferred:
        a(d)
    ACB = L_TOTAL - 81920
    RR = 84
    a(f"""K2_FALLBACK:
    s_mov_b64 exec, -1
    s_lshl_b32 s6, s30, 8
    s_add_u32 s6, s6, s27
    s_lshl_b32 s6, s6, 2
    s_lshl_b32 s3, s30, 4
    s_add_u32 s6, s6, {MISC_BASE + CNT_OFF}
    s_add_u32 s3, s3, {MISC_BASE + CNT_OFF + 64 * 256}
    s_load_dword s60, s[24:25], s6
    s_load_dword s61, s[24:25], s6 offset:256
    s_load_dword s62, s[24:25], s6 offset:512
    s_load_dword s63, s[24:25], s6 offset:768
    s_load_dwordx4 s[64:67], s[24:25], s3
    s_mov_b32 s38, {TAB}
    s_mov_b32 s39, 0x00020000
    v_mov_b64 v[104:105], 0
    v_mov_b64 v[106:107], 0
    v_lshlrev_b32 v103, 4, v0
    v_add_u32 v103, {ACB}, v103
    v_add_u32 v102, 0x10000, v103
    s_cmp_lg_u32 s30, 0
    s_cbranch_scc1 K2_POLLC_ok
    v_mov_b32 v96, 128
    s_mov_b32 s3, 0x200000
    K2_POLLC:
    global_load_dword v97, v96, s[94:95] sc1
    s_waitcnt vmcnt(0)
    v_readfirstlane_b32 s4, v97
    s_cmp_ge_u32 s4, {NG}
    s_cbranch_scc1 K2_POLLC_ok
    s_sleep 2
    s_sub_u32 s3, s3, 1
    s_cmp_lg_u32 s3, 0
    s_cbranch_scc1 K2_POLLC
    K2_POLLC_ok:
    s_waitcnt vmcnt(0)
    s_barrier
    """)
    for x in range(6):
        a(f'ds_read_b128 {vr(BWV + 4 * x, 4)}, v101 offset:{L_WRF + 1024 * x}')
    for x in range(4):
        a(f'ds_write_b128 v103, v[104:107] offset:{16384 * x}')
    a(f"""ds_write_b128 v102, v[104:107]
    v_mul_u32_u24 v120, 12, v3
    v_mul_u32_u24 v121, 48, v2
    v_lshlrev_b32 v122, 2, v2
    v_subrev_u32 v{cOV}, {L_OB}, v{cOV}
    v_subrev_u32 v{cOS}, {L_OB}, v{cOS}
    s_mul_i32 s8, s30, {4 * CHUNK * 12}
    s_add_u32 s8, s8, {OVF_OFF}
    s_mov_b32 s12, 0
    s_waitcnt lgkmcnt(0)
    s_barrier
    """)
    for x in range(4):
        a(f"""s_and_b32 s{60 + x}, s{60 + x}, 0xffff
        s_min_u32 s{60 + x}, s{60 + x}, 128
        s_min_u32 s{64 + x}, s{64 + x}, {CHUNK}""")
    a(f"""K2_FB_SEG:
    s_mov_b32 s14, s60
    s_mov_b32 s60, s61
    s_mov_b32 s61, s62
    s_mov_b32 s62, s63
    s_mov_b32 s63, s64
    s_mov_b32 s64, s65
    s_mov_b32 s65, s66
    s_mov_b32 s66, s67
    s_mul_i32 s13, s12, {CELL}
    s_add_u32 s13, s13, s7
    s_sub_u32 s3, s12, 4
    s_mul_i32 s3, s3, {CHUNK * 12}
    s_add_u32 s3, s3, s8
    s_cmp_ge_u32 s12, 4
    s_cselect_b32 s13, s3, s13
    K2_FB_BATCH:
    s_cmp_le_i32 s14, 0
    s_cbranch_scc1 K2_FB_NEXT
    buffer_load_dword v{GA}, v120, s[40:43], s13 offen offset:4 {HL}
    """)
    for r in range(4):
        a(f'buffer_load_dwordx3 {vr(RR + 4 * r, 3)}, v121, s[40:43], s13 offen offset:{12 * r} {HL}')
    a(f"""s_waitcnt vmcnt(4)
    v_and_b32 v{GA}, 0xffff, v{GA}
    v_add_u32 v{GA}, v{GA}, v{cQ8}
    buffer_load_dwordx2 {vr(A, 2)}, v{GA}, s[40:43], 0 offen {HL}
    s_waitcnt vmcnt(1)""")
    for r in range(4):
        R = RR + 4 * r
        a(f"""v_mad_u32_u16 v{R + 3}, v{R}, v{c256}, v{cLM}
        buffer_load_dwordx4 {vr(D + 4 * r, 4)}, v{R + 3}, s[32:35], 0 offen {HL}
        v_add_u32 v{U}, {r}, v122
        v_cmp_gt_i32 {sr(68 + 2 * r, 2)}, s14, v{U}
        v_subrev_u16 v{U}, s28, v{R + 2}
        v_cmp_gt_u16 vcc, s29, v{U}
        s_and_b64 {sr(68 + 2 * r, 2)}, {sr(68 + 2 * r, 2)}, vcc""")
    a('s_waitcnt vmcnt(4)')
    for x in range(4):
        a(f'v_mfma_f32_16x16x16_bf16 {vr(W + 4 * x, 4)}, {vr(A, 2)}, {vr(BWV + 2 * x, 2)}, 0')
    a('s_waitcnt vmcnt(0)')
    for r in range(4):
        R = RR + 4 * r
        f = unpack(r)
        w = lambda x: W + 4 * x + r
        a(f"""v_mul_f32 v{U + 4}, v{f[6]}, v{w(2)}
        v_mul_f32 v{U + 5}, v{f[7]}, v{w(3)}
        v_mad_u32_u16 v{U + 6}, v{R + 2}, v{c256}, v{cOV}
        v_lshlrev_b32 v{U + 6}, 1, v{U + 6}
        v_add_u32 v{U + 6}, {ACB}, v{U + 6}""")
        for kk in range(3):
            for pa in range(2):
                a(f"""v_mul_f32 v{40 + 2 * kk + pa}, v{f[2 * kk + pa]}, v{w(pa)}
                v_fmac_f32 v{40 + 2 * kk + pa}, v{U + 4 + pa}, v{R + kk}""")
        a(f"""buffer_load_dwordx4 {vr(D + 4 * r, 4)}, v{R + 3}, s[36:39], 0 offen {HL}
        s_mov_b64 exec, {sr(68 + 2 * r, 2)}""")
        for kk in range(3):
            for pa in range(2):
                a(f'ds_add_f32 v{U + 6}, v{40 + 2 * kk + pa} offset:{128 * kk + 4 * pa}')
        a("""s_mov_b64 exec, -1
        s_waitcnt lgkmcnt(0)""")
    for x in range(8):
        a(f'v_mfma_f32_16x16x16_bf16 {vr(W + 4 * x, 4)}, {vr(A, 2)}, {vr(BWS + 2 * x, 2)}, 0')
    a('s_waitcnt vmcnt(0)')
    for r in range(4):
        R = RR + 4 * r
        f = unpack(r)
        a(f"""v_subrev_u16 v{U + 6}, s11, v{R + 2}
        v_cmp_gt_u16 vcc, s20, v{U + 6}
        v_mad_u32_u16 v{U + 6}, v{U + 6}, v{c1024}, v{cOS}
        v_lshlrev_b32 v{U + 6}, 1, v{U + 6}
        v_add_u32 v{U + 6}, {ACB}, v{U + 6}""")
        for t in range(8):
            a(f'v_mul_f32 v{f[t]}, v{f[t]}, v{W + 4 * t + r}')
        a(f's_and_b64 exec, vcc, {sr(68 + 2 * r, 2)}')
        for t in range(8):
            a(f'ds_add_f32 v{U + 6}, v{f[t]} offset:{(t >> 2) * 512 + (t & 3) * 4}')
        a("""s_mov_b64 exec, -1
        s_waitcnt lgkmcnt(0)""")
    a(f"""s_add_u32 s13, s13, 192
    s_sub_u32 s14, s14, 16
    s_branch K2_FB_BATCH
    K2_FB_NEXT:
    s_add_u32 s12, s12, 1
    s_cmp_lt_u32 s12, 8
    s_cbranch_scc1 K2_FB_SEG
    s_mov_b32 s9, 1
    s_branch K2_STREAM_DONE
    K2_FB_FIN:
    v_lshlrev_b32 v40, 5, v0
    v_add_u32 v40, {ACB}, v40
    v_add_u32 v41, 0x10000, v40
    s_waitcnt lgkmcnt(0)
    s_barrier
    ds_read_b128 v[80:83], v40
    ds_read_b128 v[84:87], v40 offset:16
    ds_read_b128 v[88:91], v40 offset:32768
    ds_read_b128 v[92:95], v40 offset:32784
    ds_read_b128 v[96:99], v41
    ds_read_b128 v[100:103], v41 offset:16
    s_waitcnt lgkmcnt(0)""")
    for x in range(12):
        a(f'v_cvt_pk_bf16_f32 v{OBR + x}, v{80 + 2 * x}, v{81 + 2 * x}')
    a('s_branch K2_EPI')
    a("""K2_END:
    s_endpgm""")
    return a


def kernel_text(name, a):
    n = a.fix_hazards()
    nv, ns = a.max_regs()
    nv4 = (nv + 3) // 4 * 4
    body = f'.globl {name}\n.p2align 8\n.type {name},@function\n{name}:\n' + a.text()
    desc = f'''.p2align 6
.amdhsa_kernel {name}
  .amdhsa_next_free_vgpr {nv4}
  .amdhsa_next_free_sgpr {max(ns, 16)}
  .amdhsa_accum_offset {nv4}
  .amdhsa_group_segment_fixed_size 0
  .amdhsa_kernarg_size 88
  .amdhsa_user_sgpr_count 2
  .amdhsa_user_sgpr_kernarg_segment_ptr 1
  .amdhsa_system_sgpr_workgroup_id_x 1
  .amdhsa_float_denorm_mode_32 3
.end_amdhsa_kernel
'''
    print(f'{name}: vgpr {nv} sgpr {ns} nops inserted {n} instrs {sum(1 for k, _ in a.items if k == "i")}'
          f' bankconf {OPT.get("_bankconf", 0)}', file=sys.stderr)
    return body, desc


def main(out):
    hdr = open('cdna_kernels/' + NAME + '.s.ref').read().split('; Override launch')[0]
    a = Asm()
    gen_k1(a)
    gen_k2(a)
    kn = NAME + '_kernel'
    if OPT.get('aslist'):
        launch = f'; @launch kernel={kn} grid=(256,1,1) block=(1024,1,1) lds={L_TOTAL}'
    else:
        launch = f'; @launch grid=(256,1,1) block=(1024,1,1) lds={L_TOTAL}'
    b1, d1 = kernel_text(kn, a)
    txt = hdr + launch + '\n.amdgcn_target "amdgcn-amd-amdhsa--gfx950"\n.text\n' + b1
    txt += '.section .rodata,"a"\n' + d1
    open(out, 'w').write(txt)


if __name__ == '__main__':
    for kv in sys.argv[2:]:
        k, v = kv.split('=', 1)
        OPT[k] = int(v) if v.lstrip('-').isdigit() else v
    main(sys.argv[1] if len(sys.argv) > 1 else 'v6.s')
```
